```python
import torch

def _softmax(x, axis=-1):
    return torch.softmax(x, dim=axis)
def _gelu(x):
    return torch.nn.functional.gelu(x, approximate="tanh")
def _silu(x):
    return torch.nn.functional.silu(x)
def _sigmoid(x):
    return torch.sigmoid(x)
def _layernorm(x, axis=-1, eps=1e-5):
    m = x.mean(dim=axis, keepdim=True)
    v = x.var(dim=axis, keepdim=True, unbiased=False)
    return (x - m) / torch.sqrt(v + eps)
def _scatter_add(tgt, idx, src, axis=0):
    return tgt.clone().index_add_(axis, idx, src)
def _segment_sum(src, seg, n):
    out = torch.zeros((n,) + src.shape[1:], dtype=src.dtype)
    return out.index_add_(0, seg, src)
def _pad(x, pw):
    flat = tuple(v for pair in reversed(pw) for v in pair)
    return torch.nn.functional.pad(x, flat)

kernel_name = 'gated_mix__ssm_conv_s5__ssm_conv_s4d__prompt'

def setup_inputs():

    _w = (lambda a: (lambda t: t.to(torch.bfloat16) if t.is_floating_point() else t)(torch.as_tensor(a)))
    def _A_setup():
        B, S, D = 1, 2048, 512
        P = D
        Lambda_re = -0.5 * (lambda _x: torch.exp(torch.as_tensor(_x)))((lambda *s: torch.randn(*s, dtype=torch.bfloat16) * 0.2)(P))
        Lambda_im = (lambda *s: torch.randn(*s, dtype=torch.bfloat16) * 0.4)(P) * 1.0
        B_re = (lambda *s: torch.randn(*s, dtype=torch.bfloat16) * 0.2)(P, D) * (D ** -0.5)
        B_im = (lambda *s: torch.randn(*s, dtype=torch.bfloat16) * 0.2)(P, D) * (D ** -0.5)
        C_re = (lambda *s: torch.randn(*s, dtype=torch.bfloat16) * 0.2)(D, P) * (P ** -0.5)
        C_im = (lambda *s: torch.randn(*s, dtype=torch.bfloat16) * 0.2)(D, P) * (P ** -0.5)
        log_dt = (lambda *s: torch.randn(*s, dtype=torch.bfloat16) * 0.2)(P) * 0.3 - 2.0
        Dskip = (lambda *s: torch.randn(*s, dtype=torch.bfloat16) * 0.05)(D)
        return {
            "x": _w((lambda *s: torch.randn(*s, dtype=torch.bfloat16) * 0.05)(B, S, D)),
            "Lambda_re": _w(Lambda_re),
            "Lambda_im": _w(Lambda_im),
            "B_re": _w(B_re),
            "B_im": _w(B_im),
            "C_re": _w(C_re),
            "C_im": _w(C_im),
            "log_dt": _w(log_dt),
            "Dskip": _w(Dskip),
        }
    _A_in = _A_setup()

    def _B_setup():
        Bsz, L, D, N = 1, 2048, 512, 128
        return {
            "u": _w((lambda *s: torch.randn(*s, dtype=torch.bfloat16) * 0.05)(Bsz, L, D)),
            "log_A_real": _w((lambda *s: torch.randn(*s, dtype=torch.bfloat16) * 3.2)(D, N) * 0.5),
            "A_imag": _w((lambda *s: torch.randn(*s, dtype=torch.bfloat16) * 0.05)(D, N) * 3.14),
            "C_real": _w((lambda *s: torch.randn(*s, dtype=torch.bfloat16) * 0.1)(D, N) / N ** 0.5),
            "C_imag": _w((lambda *s: torch.randn(*s, dtype=torch.bfloat16) * 0.1)(D, N) / N ** 0.5),
            "log_dt": _w((lambda *s: torch.randn(*s, dtype=torch.bfloat16) * 0.05)(D) * 0.5 - 4.0),
            "D_skip": _w((lambda *s: torch.randn(*s, dtype=torch.bfloat16) * 0.05)(D)),
        }
    _B_in = _B_setup()

    return {
        "A_x": _A_in["x"],
        "A_Lambda_re": _A_in["Lambda_re"],
        "A_Lambda_im": _A_in["Lambda_im"],
        "A_B_re": _A_in["B_re"],
        "A_B_im": _A_in["B_im"],
        "A_C_re": _A_in["C_re"],
        "A_C_im": _A_in["C_im"],
        "A_log_dt": _A_in["log_dt"],
        "A_Dskip": _A_in["Dskip"],
        "B_u": _B_in["u"],
        "B_log_A_real": _B_in["log_A_real"],
        "B_A_imag": _B_in["A_imag"],
        "B_C_real": _B_in["C_real"],
        "B_C_imag": _B_in["C_imag"],
        "B_log_dt": _B_in["log_dt"],
        "B_D_skip": _B_in["D_skip"],
        "gate_w": _w((lambda *s: torch.randn(*s, dtype=torch.bfloat16) * 0.05)(512) * 16.0),
    }

def reference(A_x, A_Lambda_re, A_Lambda_im, A_B_re, A_B_im, A_C_re, A_C_im, A_log_dt, A_Dskip, B_u, B_log_A_real, B_A_imag, B_C_real, B_C_imag, B_log_dt, B_D_skip, gate_w):
    def _A_ref(x, Lambda_re, Lambda_im, B_re, B_im, C_re, C_im, log_dt, Dskip):
        Bsz, L, H = x.shape
        Lam = Lambda_re + 1j * Lambda_im
        Bmat = B_re + 1j * B_im
        Cmat = C_re + 1j * C_im
        dt = torch.exp(log_dt)
        Lam_bar = torch.exp(dt * Lam)
        B_bar = ((Lam_bar - 1.0) / Lam)[:, None] * Bmat
        Bu = torch.einsum("bld,pd->blp", x + 0j, B_bar)
        h = torch.zeros_like(Bu[:, 0, :])
        hs = []
        for t in range(L):
            h = Lam_bar[None, :] * h + Bu[:, t, :]
            hs.append(h)
        hseq = torch.stack(hs, 1)
        y = 2.0 * torch.einsum("blp,dp->bld", hseq, Cmat).real + x * Dskip[None, None, :]
        return y

    def _B_ref(u, log_A_real, A_imag, C_real, C_imag, log_dt, D_skip):
        L = u.shape[1]
        dt = torch.exp(log_dt)
        A = -torch.exp(log_A_real) + 1j * A_imag
        C = (C_real + 1j * C_imag) * dt[:, None]
        pos = (lambda x, dt: x.to(dt))(torch.arange(L), log_dt.dtype)
        P = torch.exp((A * dt[:, None])[:, :, None] * pos[None, None, :])
        K = 2.0 * torch.einsum("dn,dnl->dl", C, P).real
        L2 = 2 * L
        u_t = (lambda x, *d: x.permute(*d))(u, 0, 2, 1)
        Kf = (lambda x, *a, **k: torch.fft.rfft(x.float(), *a, **k))(K, L2)
        Uf = (lambda x, *a, **k: torch.fft.rfft(x.float(), *a, **k))(u_t, L2)
        y = (lambda x, *a, **k: torch.fft.irfft(x, *a, **k).to(torch.bfloat16))(Uf * Kf[None, :, :], L2)[:, :, :L]
        y = (lambda x, *d: x.permute(*d))(y, 0, 2, 1)
        return y + u * D_skip[None, None, :]

    x = A_x
    g = _sigmoid((x * gate_w).sum(-1, keepdims=True))
    a = _A_ref(x, A_Lambda_re, A_Lambda_im, A_B_re, A_B_im, A_C_re, A_C_im, A_log_dt, A_Dskip)
    b = _B_ref(x, B_log_A_real, B_A_imag, B_C_real, B_C_imag, B_log_dt, B_D_skip)
    return g * a + (1 - g) * b
```

```python
import hazard
LOG2E = 0x3fb8aa3b
INV2PI = 0x3e22f983

WS_HT  = 0
WS_BT  = 4 << 20
WS_E   = 6 << 20
WS_LAM = WS_E + 65536
WS_G   = WS_LAM + 8192
WS_SIZE = 7 << 20

class Asm:
    def __init__(self):
        self.lines = []
    def __call__(self, s):
        for l in s.strip('\n').split('\n'):
            l = l.strip()
            if not l: continue
            if l.endswith(':') and ' ' not in l: self.lines.append(l)
            else: self.lines.append('    ' + l)
    def label(self, n): self.lines.append(n + ':')
    def c(self, s): self.lines.append('    ; ' + s)
    def text(self, fix=True):
        L = hazard.fix(self.lines) if fix else self.lines
        return '\n'.join(L) + '\n'

def vr(b, n=1):
    return f"v{b}" if n == 1 else f"v[{b}:{b+n-1}]"
def sr(b, n=1):
    return f"s{b}" if n == 1 else f"s[{b}:{b+n-1}]"

def srd(a, base, size, ptr=None):
    if ptr is not None and ptr != base:
        a(f"s_mov_b32 s{base}, s{ptr}")
        a(f"s_mov_b32 s{base+1}, s{ptr+1}")
    a(f"s_mov_b32 s{base+2}, {size:#x}")
    a(f"s_mov_b32 s{base+3}, 0x20000")

def cmul(a, dr, di, ar, ai, br, bi, t0, t1):
    a(f"v_mul_f32 v{t0}, v{ai}, v{bi}")
    a(f"v_mul_f32 v{t1}, v{ai}, v{br}")
    if dr not in (ar, bi):
        a(f"v_fma_f32 v{dr}, v{ar}, v{br}, -v{t0}")
        a(f"v_fma_f32 v{di}, v{ar}, v{bi}, v{t1}")
    else:
        assert di not in (ar, br), (dr, di, ar, ai, br, bi)
        a(f"v_fma_f32 v{di}, v{ar}, v{bi}, v{t1}")
        a(f"v_fma_f32 v{dr}, v{ar}, v{br}, -v{t0}")

def csq(a, dr, di, ar, ai, t0):
    a(f"v_mul_f32 v{t0}, v{ai}, v{ai}")
    if di == ai:
        a(f"v_mul_f32 v{di}, v{ar}, v{ai}")
        a(f"v_add_f32 v{di}, v{di}, v{di}")
    else:
        a(f"v_add_f32 v{di}, v{ai}, v{ai}")
        a(f"v_mul_f32 v{di}, v{ar}, v{di}")
    a(f"v_fma_f32 v{dr}, v{ar}, v{ar}, -v{t0}")

def rbf(a, d, s):
    a(f"v_cvt_pk_bf16_f32 v{d}, v{s}, v{s}")
    a(f"v_and_b32 v{d}, 0xffff0000, v{d}")

def cexp(a, dr, di, er, ph, m, t0, t1):
    if m == '1.0':
        a(f"v_exp_f32 v{t0}, v{er}")
        a(f"v_fract_f32 v{t1}, v{ph}")
    else:
        a(f"v_mul_f32 v{t0}, {m}, v{er}")
        a(f"v_mul_f32 v{t1}, {m}, v{ph}")
        a(f"v_exp_f32 v{t0}, v{t0}")
        a(f"v_fract_f32 v{t1}, v{t1}")
    a(f"v_cos_f32 v{dr}, v{t1}")
    a(f"v_sin_f32 v{di}, v{t1}")
    a(f"v_mul_f32 v{dr}, v{dr}, v{t0}")
    a(f"v_mul_f32 v{di}, v{di}, v{t0}")

def fhex(x):
    import struct
    return "0x%08x" % struct.unpack("<I", struct.pack("<f", x))[0]

def kernel_head(name):
    return f""".globl {name}
.p2align 8
.type {name},@function
{name}:
"""
def kernel_desc(name, nv, acc=None, ns=100):
    acc = acc or nv
    return f""".amdhsa_kernel {name}
  .amdhsa_next_free_vgpr {nv}
  .amdhsa_next_free_sgpr {ns}
  .amdhsa_accum_offset {acc}
  .amdhsa_group_segment_fixed_size 0
  .amdhsa_kernarg_size 160
  .amdhsa_user_sgpr_count 2
  .amdhsa_user_sgpr_kernarg_segment_ptr 1
  .amdhsa_system_sgpr_workgroup_id_x 1
  .amdhsa_float_denorm_mode_32 3
.end_amdhsa_kernel
"""
```

```python
import re

REG_RE = re.compile(r'^(-|\|)?(abs\()?([vsa])(\d+|\[(\d+):(\d+)\])\)?\|?$')
def parse_reg(tok):
    tok = tok.strip()
    if tok == 'vcc': return [('s', 'vcc')]
    if tok in ('vcc_lo', 'vcc_hi'): return [('s', 'vcc')]
    if tok == 'exec': return [('s', 'exec')]
    if tok == 'm0': return [('s', 'm0')]
    m = REG_RE.match(tok)
    if not m: return []
    kind = m.group(3)
    if m.group(5) is not None:
        lo, hi = int(m.group(5)), int(m.group(6))
    else:
        lo = hi = int(m.group(4))
    if kind == 'a': kind = 'v'; lo += 1000; hi += 1000
    return [(kind, r) for r in range(lo, hi+1)]

TRANS = ('v_exp_f32', 'v_log_f32', 'v_rcp_f32', 'v_rsq_f32', 'v_sqrt_f32', 'v_sin_f32', 'v_cos_f32', 'v_rcp_iflag_f32')
MFMA_PASS = {'v_mfma_f32_32x32x16_bf16': 8, 'v_mfma_f32_16x16x32_bf16': 4}

class Ins:
    def __init__(self, text):
        self.text = text
        t = text.split(';')[0].strip()
        self.is_label = t.endswith(':') and ' ' not in t
        self.empty = (t == '') or t.startswith('.')
        self.op = ''; self.dst = []; self.src = []; self.mods = ''
        if self.is_label or self.empty: return
        parts = t.split(None, 1)
        self.op = parts[0]
        rest = parts[1] if len(parts) > 1 else ''
        ops = []; cur = ''; depth = 0
        for ch in rest:
            if ch == '[': depth += 1
            if ch == ']': depth -= 1
            if ch == ',' and depth == 0:
                ops.append(cur.strip()); cur = ''
            else: cur += ch
        if cur.strip(): ops.append(cur.strip())
        if ops:
            last = ops[-1].split()
            ops[-1] = last[0]
            self.mods = ' '.join(last[1:])
        self.ops = ops
        op = self.op
        R = lambda i: parse_reg(ops[i]) if i < len(ops) else []
        allsrc = lambda st: sum((R(i) for i in range(st, len(ops))), [])
        self.valu = op.startswith('v_')
        self.mfma = op.startswith('v_mfma')
        self.trans = op.replace('_e32','').replace('_e64','') in TRANS
        self.dpp = ('dpp' in op) or ('row_' in self.mods) or ('quad_perm' in self.mods) or ('wave_' in self.mods)
        self.vmem = op.startswith('buffer_') or op.startswith('global_')
        self.ds = op.startswith('ds_')
        self.salu = op.startswith('s_')
        self.lds_dma = self.vmem and (' lds' in (' ' + self.mods) or 'load_lds' in op)
        if self.valu:
            if op.startswith('v_cmp'):
                self.dst = R(0); self.src = allsrc(1)
                if op.startswith('v_cmpx'): self.dst += [('s','exec')]
            elif op.startswith('v_swap') or op.startswith('v_permlane16_swap') or op.startswith('v_permlane32_swap'):
                self.dst = R(0) + R(1); self.src = R(0) + R(1)
            elif op.startswith(('v_add_co', 'v_sub_co', 'v_addc_co', 'v_subb_co', 'v_subrev_co')):
                self.dst = R(0) + R(1); self.src = allsrc(2)
            elif op.startswith(('v_fmac', 'v_mac', 'v_dot2c', 'v_pk_fmac')):
                self.dst = R(0); self.src = R(0) + allsrc(1)
            else:
                self.dst = R(0); self.src = allsrc(1)
                if op.startswith('v_cndmask') and len(ops) == 3: self.src += [('s','vcc')]
                if self.dpp and op.startswith('v_mov'): self.src += []
        elif self.vmem:
            if 'load' in op and not self.lds_dma:
                self.dst = R(0); self.src = allsrc(1)
            else:
                self.src = allsrc(0)
            self.store_data = []
            if 'store' in op:
                if op.startswith('buffer_'): self.store_data = R(0)
                else: self.store_data = R(1)
        elif self.ds:
            if op.startswith('ds_read') or op.startswith('ds_bpermute') or op.startswith('ds_swizzle') or op.startswith('ds_permute'):
                self.dst = R(0); self.src = allsrc(1)
            else:
                self.src = allsrc(0)
        elif self.salu:
            if op.startswith(('s_cmp', 's_cbranch', 's_branch', 's_waitcnt', 's_barrier', 's_nop', 's_endpgm', 's_setprio', 's_bitcmp', 's_sleep')):
                self.src = allsrc(0)
            elif op.startswith(('s_load', 's_memtime', 's_memrealtime')):
                self.dst = R(0); self.src = allsrc(1)
            else:
                self.dst = R(0); self.src = allsrc(1)
                if 'saveexec' in op: self.dst += [('s','exec')]; self.src += [('s','exec')]
    def states(self):
        if self.is_label or self.empty: return 0
        if self.op == 's_nop': return int(self.ops[0], 0) + 1
        return 1

def need(prod, cons):
    n = 0
    pd = set(prod.dst)
    if not pd and not getattr(prod, 'store_data', None) and not prod.mfma: return 0
    cs = set(cons.src); cd = set(cons.dst)
    vd = {r for r in pd if r[0] == 'v'}; sd = {r for r in pd if r[0] == 's'}
    if prod.valu and not prod.mfma:
        if cons.mfma and (vd & cs): n = max(n, 2)
        if cons.valu and cons.dpp and (vd & cs): n = max(n, 2)
        if cons.valu and cons.dpp and cons.op.startswith('v_mov') and (vd & cd): n = max(n, 2)
        if cons.op.startswith(('v_readlane', 'v_readfirstlane')) and (vd & cs): n = max(n, 1)
        if cons.op.startswith(('v_permlane',)) and (vd & cs): n = max(n, 2)
        if prod.trans and cons.valu and not cons.trans and (vd & cs): n = max(n, 1)
        if prod.trans and (cons.ds or cons.vmem) and (vd & cs): n = max(n, 1)
        if sd:
            if cons.valu and (sd & cs):
                n = max(n, 4 if cons.op.startswith(('v_readlane','v_writelane')) else 2)
            if cons.vmem and (sd & cs): n = max(n, 5)
            if ('s','exec') in sd:
                if cons.valu and cons.dpp: n = max(n, 5)
                if cons.mfma: n = max(n, 4)
                if cons.op.startswith(('v_readlane','v_readfirstlane','v_permlane')): n = max(n, 4)
            if cons.salu and (sd & cs): n = max(n, 1)
        if 'sdwa' in prod.op and cons.valu and (vd & cs): n = max(n, 1)
    if prod.mfma:
        p = MFMA_PASS[prod.op]
        D = vd
        if cons.mfma:
            cD = set(parse_reg(cons.ops[0])); cC = set(parse_reg(cons.ops[3])); cAB = set(parse_reg(cons.ops[1])) | set(parse_reg(cons.ops[2]))
            if D & cAB: n = max(n, {4: 8, 8: 12}[p])
            if D & cC:
                if not (cC == D and MFMA_PASS[cons.op] == p): n = max(n, {4: 6, 8: 10}[p])
            elif D & cD: n = max(n, {4: 6, 8: 10}[p])
        else:
            if (D & cs) or (D & cd): n = max(n, {4: 8, 8: 12}[p])
        C = set(parse_reg(prod.ops[3]))
        if cons.valu and not cons.mfma and (C & cd): n = max(n, {4: 3, 8: 7}[p])
    if prod.salu and ('s','m0') in sd and (cons.lds_dma if cons.vmem else False): n = max(n, 1)
    if prod.vmem and getattr(prod, 'store_data', None):
        if len(prod.store_data) >= 3 and (set(prod.store_data) & cd):
            n = max(n, 2)
    return n

MAXW = 24
def fix(lines):
    ins = [Ins(l) for l in lines]
    labels = {i.text.split(';')[0].strip()[:-1]: k for k, i in enumerate(ins) if i.is_label}
    extra = [0]*len(ins)
    for _ in range(6):
        changed = False
        label_in = {}
        for sweep in range(3):
            state = {}
            for k, c in enumerate(ins):
                if c.is_label:
                    name = c.text.split(';')[0].strip()[:-1]
                    inc = label_in.get(name)
                    if inc is not None:
                        for p, a in inc.items():
                            state[p] = min(state.get(p, 99), a)
                    continue
                if c.empty: continue
                if extra[k]:
                    state = {p: a + extra[k] for p, a in state.items() if a + extra[k] < MAXW}
                req = 0
                for p, a in state.items():
                    n = need(ins[p], c)
                    if n > a: req = max(req, n - a)
                if req and sweep == 2:
                    extra[k] += req; changed = True
                    state = {p: a + req for p, a in state.items() if a + req < MAXW}
                st = c.states()
                state = {p: a + st for p, a in state.items() if a + st < MAXW}
                if c.valu or c.vmem or c.salu:
                    if c.dst or getattr(c, 'store_data', None): state[k] = 0 if c.op != 's_nop' else 0
                if c.op.startswith('s_cbranch') or c.op == 's_branch':
                    tgt = c.ops[0]
                    d = label_in.setdefault(tgt, {})
                    for p, a in state.items(): d[p] = min(d.get(p, 99), a)
                    if c.op == 's_branch': state = {}
                if c.op == 's_endpgm': state = {}
        if not changed: break
    out = []
    for k, c in enumerate(ins):
        e = extra[k]
        while e > 0:
            n = min(e, 16)
            out.append(f"    s_nop {n-1}")
            e -= n
        out.append(c.text)
    return out
```

```python
from common import *

def gen_A(a, dbg=False):
    a("""
    s_load_dwordx2 s[8:9], s[0:1], 0          ; x
    s_load_dwordx4 s[28:31], s[0:1], 24
    s_load_dwordx2 s[16:17], s[0:1], 152      ; ws
    s_load_dwordx4 s[20:23], s[0:1], 8
    s_load_dwordx2 s[24:25], s[0:1], 56       ; A_log_dt
    s_load_dwordx2 s[26:27], s[0:1], 128      ; gate_w
    v_and_b32 v1, 63, v0
    v_lshrrev_b32 v2, 6, v0
    s_and_b32 s33, s2, 7
    v_readfirstlane_b32 s32, v2
    s_lshr_b32 s34, s2, 3
    s_sub_u32 s34, s34, 16                    ; i
    s_lshr_b32 s35, s34, 2                    ; i>>2
    s_and_b32 s36, s34, 3                     ; i&3
    s_lshr_b32 s37, s33, 1
    s_lshl_b32 s37, s37, 2
    s_add_u32 s37, s37, s35                   ; chunk c
    s_and_b32 s38, s33, 1
    s_lshl_b32 s38, s38, 2
    s_add_u32 s38, s38, s36                   ; slice s
    s_add_u32 s39, s35, s36
    s_and_b32 s39, s39, 3
    s_lshl_b32 s39, s39, 1
    """)
    C, S, ROT, W = 37, 38, 39, 32
    vXo0, vXo1, vBo0, vBo1 = 4, 5, 6, 7
    a("""
    v_lshrrev_b32 v8, 3, v1                   ; r8
    v_and_b32 v9, 7, v1                       ; sig
    v_lshrrev_b32 v10, 1, v8                  ; r8>>1
    v_xor_b32 v11, v9, v10
    v_xor_b32 v12, 4, v11
    v_lshlrev_b32 v13, 10, v8                 ; r8*1024
    v_lshl_add_u32 v4, v11, 4, v13
    v_lshl_add_u32 v5, v12, 4, v13
    v_add_u32 v5, 0x2000, v5                  ; +8 rows
    """)
    a(f"""
    s_lshl_b32 s40, s{C}, 17
    s_lshl_b32 s41, s{W}, 14
    s_add_u32 s40, s40, s41
    s_and_b32 s42, s{W}, 3
    s_lshl_b32 s42, s42, 14
    s_lshl_b32 s43, s{S}, 16
    s_add_u32 s42, s42, s43
    v_add_u32 v6, s42, v4
    v_add_u32 v7, s42, v5
    v_add_u32 v4, s40, v4
    v_add_u32 v5, s40, v5
    """)
    vP = 14
    a(f"""
    s_and_b32 s44, s{W}, 1                    ; ws
    s_lshr_b32 s45, s{W}, 1                   ; wr
    s_lshl_b32 s46, s{S}, 6
    s_lshl_b32 s47, s44, 5
    s_add_u32 s46, s46, s47
    v_and_b32 v{vP}, 31, v1
    v_add_u32 v{vP}, s46, v{vP}               ; p
    v_lshlrev_b32 v15, 1, v{vP}
    """)
    WS_, WR = 44, 45
    a("s_waitcnt lgkmcnt(0)")
    srd(a, 8, 0x200000)
    srd(a, 16, WS_SIZE)
    a(f"""
    s_cmp_lt_u32 s{W}, 4
    s_cselect_b32 s12, s28, s30
    s_cselect_b32 s13, s29, s31
    """)
    srd(a, 12, 0x80000)
    vLre, vLim, vLdt = 16, 17, 18
    vGX0, vGX1, vGW = 20, 24, 28
    a(f"""
    global_load_ushort v{vLre}, v15, s[20:21]
    global_load_ushort v{vLim}, v15, s[22:23]
    global_load_ushort v{vLdt}, v15, s[24:25]
    s_lshl_b32 s48, s{C}, 7
    s_lshl_b32 s49, s{S}, 4
    s_add_u32 s48, s48, s49
    s_lshl_b32 s49, s{W}, 1
    s_add_u32 s48, s48, s49
    s_lshl_b32 s49, s48, 10
    v_lshlrev_b32 v3, 4, v1
    global_load_dwordx4 v[{vGW}:{vGW+3}], v3, s[26:27]
    buffer_load_dwordx4 v[{vGX0}:{vGX0+3}], v3, s[8:11], s49 offen
    buffer_load_dwordx4 v[{vGX1}:{vGX1+3}], v3, s[8:11], s49 offen offset:1024
    """)
    NSMALL = 6
    a(f"s_lshl_b32 s50, s{W}, 11")
    def issue(i):
        slot = i & 3
        a(f"s_add_u32 s51, s{ROT}, {i}")
        a("s_and_b32 s51, s51, 7")
        a("s_lshl_b32 s51, s51, 7")
        base = slot*32768
        for (off, vo, sr_) in ((0, vXo0, 8), (1024, vXo1, 8), (16384, vBo0, 12), (16384+1024, vBo1, 12)):
            a(f"s_add_u32 m0, s50, {base+off}")
            a(f"buffer_load_dwordx4 v{vo}, s[{sr_}:{sr_+3}], s51 offen lds")
    for i in range(4): issue(i)
    XCH = 131072
    a(f"""
    v_mov_b32 v32, 0
    v_mov_b32 v33, 0
    v_lshlrev_b32 v34, 3, v0
    v_add_u32 v34, {XCH}, v34
    v_cmp_gt_u32 vcc, 448, v0
    s_and_saveexec_b64 s[52:53], vcc
    s_cbranch_execz L_A_nozero
    ds_write_b64 v34, v[32:33]
    L_A_nozero:
    s_mov_b64 exec, s[52:53]
    """)
    vXA, vBA = 36, 40
    a(f"""
    v_and_b32 v8, 31, v1                      ; m
    v_lshrrev_b32 v9, 5, v1                   ; kg
    v_bfe_u32 v10, v8, 2, 1
    v_lshlrev_b32 v10, 4, v10                 ; 16*((m>>2)&1)
    v_lshrrev_b32 v11, 3, v8
    v_lshl_add_u32 v10, v11, 2, v10           ; +4*(m>>3)
    v_and_b32 v11, 3, v8
    v_add_u32 v10, v10, v11                   ; t(m)
    v_bfe_u32 v11, v10, 1, 3                  ; key
    v_xor_b32 v11, v11, v9
    v_lshlrev_b32 v11, 4, v11
    s_lshl_b32 s54, s{WR}, 12                 ; 32*wr*128
    v_lshl_add_u32 v11, v10, 7, v11
    v_add_u32 v{vXA}, s54, v11
    v_bfe_u32 v11, v8, 1, 3
    v_xor_b32 v11, v11, v9
    v_lshlrev_b32 v11, 4, v11
    v_lshl_add_u32 v11, v8, 7, v11
    s_lshl_b32 s54, s{WS_}, 12
    s_add_u32 s54, s54, 16384
    v_add_u32 v{vBA}, s54, v11
    """)
    for st in range(1, 4):
        a(f"v_xor_b32 v{vXA+st}, {32*st}, v{vXA}")
        a(f"v_xor_b32 v{vBA+st}, {32*st}, v{vBA}")
    ACR, ACI = 64, 80
    for r in range(32): a(f"v_mov_b32 v{ACR+r}, 0")
    a(f"s_waitcnt vmcnt({3+16})")
    vEr, vPh, vLr, vLi, vCr, vCi, vL16r, vL16i = 44, 45, 46, 47, 48, 49, 50, 51
    T0, T1, T2, T3 = 52, 53, 54, 55
    a(f"""
    v_lshlrev_b32 v{vLre}, 16, v{vLre}
    v_lshlrev_b32 v{vLim}, 16, v{vLim}
    v_lshlrev_b32 v{vLdt}, 16, v{vLdt}
    v_mul_f32 v{T0}, {LOG2E:#x}, v{vLdt}
    v_exp_f32 v{T0}, v{T0}
    """)
    rbf(a, T0, T0)
    a(f"""
    v_mul_f32 v{vEr}, v{T0}, v{vLre}
    v_mul_f32 v{vPh}, v{T0}, v{vLim}
    v_mul_f32 v{vEr}, {LOG2E:#x}, v{vEr}
    v_mul_f32 v{vPh}, {INV2PI:#x}, v{vPh}
    """)
    cexp(a, vLr, vLi, vEr, vPh, '1.0', T0, T1)
    a(f"""
    v_add_f32 v{T0}, -1.0, v{vLr}
    v_mul_f32 v{T1}, v{vLre}, v{vLre}
    v_fma_f32 v{T1}, v{vLim}, v{vLim}, v{T1}
    v_rcp_f32 v{T1}, v{T1}
    v_mul_f32 v{T2}, v{T0}, v{vLre}
    v_fma_f32 v{T2}, v{vLi}, v{vLim}, v{T2}
    v_mul_f32 v{T3}, v{T0}, v{vLim}
    v_fma_f32 v{T3}, v{vLi}, v{vLre}, -v{T3}
    v_mul_f32 v{vCr}, v{T2}, v{T1}
    v_mul_f32 v{vCi}, v{T3}, v{T1}
    """)
    csq(a, vL16r, vL16i, vLr, vLi, T0)
    for _ in range(3): csq(a, vL16r, vL16i, vL16r, vL16i, T0)
    a(f"""
    s_cmp_eq_u32 s{C}, 0
    s_cbranch_scc0 L_A_nolam
    s_cmp_eq_u32 s{WR}, 0
    s_cbranch_scc0 L_A_nolam
    v_lshlrev_b32 v{T0}, 4, v{vP}
    v_add_u32 v{T0}, {WS_LAM:#x}, v{T0}
    s_mov_b64 s[52:53], exec
    s_mov_b32 exec_hi, 0
    buffer_store_dwordx4 v[{vEr}:{vEr+3}], v{T0}, s[16:19], 0 offen
    s_mov_b64 exec, s[52:53]
    L_A_nolam:
    """)
    a("s_waitcnt vmcnt(16)")
    def gate_row(X, dst):
        first = True
        for k in range(4):
            a(f"v_lshlrev_b32 v{T0}, 16, v{X+k}")
            a(f"v_lshlrev_b32 v{T1}, 16, v{vGW+k}")
            a(f"v_and_b32 v{T2}, 0xffff0000, v{X+k}")
            a(f"v_and_b32 v{T3}, 0xffff0000, v{vGW+k}")
            if first:
                a(f"v_mul_f32 v{dst}, v{T0}, v{T1}"); first = False
            else:
                a(f"v_fmac_f32 v{dst}, v{T0}, v{T1}")
            a(f"v_fmac_f32 v{dst}, v{T2}, v{T3}")
        for n in (8, 4, 2, 1):
            a(f"v_mov_b32_dpp v{T0}, v{dst} row_ror:{n} row_mask:0xf bank_mask:0xf")
            a(f"v_add_f32 v{dst}, v{dst}, v{T0}")
    gate_row(vGX0, 56)
    gate_row(vGX1, 57)
    a(f"""
    v_readlane_b32 s56, v56, 0
    v_readlane_b32 s57, v56, 16
    v_readlane_b32 s58, v56, 32
    v_readlane_b32 s59, v56, 48
    v_readlane_b32 s60, v57, 0
    v_readlane_b32 s61, v57, 16
    v_readlane_b32 s62, v57, 32
    v_readlane_b32 s63, v57, 48
    v_mov_b32 v56, s56
    v_mov_b32 v57, s60
    v_add_f32 v56, s57, v56
    v_add_f32 v57, s61, v57
    v_add_f32 v56, s58, v56
    v_add_f32 v57, s62, v57
    v_add_f32 v56, s59, v56
    v_add_f32 v57, s63, v57
    v_cmp_eq_u32 vcc, 1, v1
    v_cndmask_b32 v56, v56, v57, vcc
    """)
    rbf(a, 56, 56)
    a(f"""
    v_mul_f32 v56, {LOG2E:#x}, v56
    v_exp_f32 v56, -v56
    v_add_f32 v56, 1.0, v56
    v_rcp_f32 v56, v56
    """)
    rbf(a, 56, 56)
    a(f"""
    v_add_u32 v57, s48, v1
    v_lshlrev_b32 v57, 2, v57
    v_add_u32 v57, {WS_G:#x}, v57
    s_mov_b64 s[52:53], exec
    s_mov_b64 exec, 3
    buffer_store_dword v56, v57, s[16:19], 0 offen
    s_mov_b64 exec, s[52:53]
    """)
    FA = [96, 100]; FBR = [104, 108]; FBI = [112, 116]
    def reads(i, st, buf):
        slot = i & 3
        off = (slot & 1)*32768
        a(f"ds_read_b128 v[{FA[buf]}:{FA[buf]+3}], v{vXA+st} offset:{off}")
        a(f"ds_read_b128 v[{FBR[buf]}:{FBR[buf]+3}], v{vBA+st} offset:{off}")
        a(f"ds_read_b128 v[{FBI[buf]}:{FBI[buf]+3}], v{vBA+st} offset:{off+8192}")
    waits = {0: 12, 1: 8, 2: 8, 3: 8, 4: 8, 5: 8, 6: 4, 7: 0}
    for i in range(8):
        a(f"s_waitcnt vmcnt({waits[i]})")
        a("s_barrier")
        if i in (2, 4, 6):
            for r in range(4):
                a(f"v_xor_b32 v{vXA+r}, 0x10000, v{vXA+r}")
                a(f"v_xor_b32 v{vBA+r}, 0x10000, v{vBA+r}")
        if 1 <= i <= 4: issue(i+3)
        reads(i, 0, 0)
        for st in range(4):
            b = st & 1
            if st < 3:
                reads(i, st+1, b ^ 1)
                a("s_waitcnt lgkmcnt(3)")
            else:
                a("s_waitcnt lgkmcnt(0)")
            a(f"v_mfma_f32_32x32x16_bf16 v[{ACR}:{ACR+15}], v[{FA[b]}:{FA[b]+3}], v[{FBR[b]}:{FBR[b]+3}], v[{ACR}:{ACR+15}]")
            a(f"v_mfma_f32_32x32x16_bf16 v[{ACI}:{ACI+15}], v[{FA[b]}:{FA[b]+3}], v[{FBI[b]}:{FBI[b]+3}], v[{ACI}:{ACI+15}]")
    for t in range(16):
        r, i_ = ACR+t, ACI+t
        a(f"v_mul_f32 v{T0}, v{vCi}, v{i_}")
        a(f"v_mul_f32 v{T1}, v{vCi}, v{r}")
        a(f"v_fma_f32 v{r}, v{vCr}, v{r}, -v{T0}")
        a(f"v_fma_f32 v{i_}, v{vCr}, v{i_}, v{T1}")
    eR, eI = 56, 57
    a(f"v_mov_b32 v{eR}, v{ACR}")
    a(f"v_mov_b32 v{eI}, v{ACI}")
    for t in range(1, 16):
        a(f"v_fma_f32 v{T0}, -v{vLi}, v{eI}, v{ACR+t}")
        a(f"v_fma_f32 v{T1}, v{vLi}, v{eR}, v{ACI+t}")
        a(f"v_fma_f32 v{eR}, v{vLr}, v{eR}, v{T0}")
        a(f"v_fma_f32 v{eI}, v{vLr}, v{eI}, v{T1}")
    a(f"""
    v_lshrrev_b32 v8, 5, v1                   ; hi
    s_lshl_b32 s54, s{WR}, 1
    v_add_u32 v8, s54, v8                     ; seg
    v_and_b32 v9, 31, v1
    s_lshl_b32 s54, s{WS_}, 5
    v_add_u32 v9, s54, v9
    v_lshlrev_b32 v9, 3, v9
    v_lshl_add_u32 v9, v8, 9, v9
    v_add_u32 v9, {XCH}, v9
    ds_write_b64 v9, v[{eR}:{eI}] offset:{7*512}
    s_waitcnt lgkmcnt(0)
    s_barrier
    """)
    EB = 96
    for i in range(7):
        a(f"ds_read_b64 v[{EB+2*i}:{EB+2*i+1}], v9 offset:{i*512}")
    a("s_waitcnt lgkmcnt(0)")
    cR, cI = EB, EB+1
    for i in range(1, 7):
        a(f"v_fma_f32 v{T0}, -v{vL16i}, v{cI}, v{EB+2*i}")
        a(f"v_fma_f32 v{T1}, v{vL16i}, v{cR}, v{EB+2*i+1}")
        a(f"v_fma_f32 v{cR}, v{vL16r}, v{cR}, v{T0}")
        a(f"v_fma_f32 v{cI}, v{vL16r}, v{cI}, v{T1}")
    a("; ---- pass 2")
    pr, pi = cR, cI
    for t in range(16):
        a(f"v_fma_f32 v{T0}, -v{vLi}, v{pi}, v{ACR+t}")
        a(f"v_fma_f32 v{T1}, v{vLi}, v{pr}, v{ACI+t}")
        a(f"v_fma_f32 v{ACR+t}, v{vLr}, v{pr}, v{T0}")
        a(f"v_fma_f32 v{ACI+t}, v{vLr}, v{pi}, v{T1}")
        pr, pi = ACR+t, ACI+t
    a(f"""
    s_cmp_eq_u32 s{WR}, 3
    s_cbranch_scc0 L_A_noE
    v_mov_b32 v{T0}, v{ACR+15}
    v_mov_b32 v{T1}, v{ACI+15}
    s_lshl_b32 s54, s{C}, 12
    s_add_u32 s54, s54, {WS_E:#x}
    v_lshlrev_b32 v{T2}, 3, v{vP}
    s_mov_b64 s[52:53], exec
    s_mov_b32 exec_lo, 0
    buffer_store_dwordx2 v[{T0}:{T1}], v{T2}, s[16:19], s54 offen
    s_mov_b64 exec, s[52:53]
    L_A_noE:
    """)
    PK = 96
    for j in range(8):
        a(f"v_cvt_pk_bf16_f32 v{PK+j}, v{ACR+2*j}, v{ACR+2*j+1}")
        a(f"v_cvt_pk_bf16_f32 v{PK+8+j}, -v{ACI+2*j}, -v{ACI+2*j+1}")
    a(f"""
    v_lshrrev_b32 v8, 5, v1
    v_lshlrev_b32 v8, 5, v8
    v_lshl_add_u32 v8, v{vP}, 12, v8          ; p*4096
    s_lshl_b32 s54, s{C}, 8                   ; 128c*2
    s_lshl_b32 s55, s{WR}, 6                  ; 32wr*2
    s_add_u32 s54, s54, s55
    s_add_u32 s55, s54, 0x200000
    buffer_store_dwordx4 v[{PK}:{PK+3}], v8, s[16:19], s54 offen
    buffer_store_dwordx4 v[{PK+4}:{PK+7}], v8, s[16:19], s54 offen offset:16
    buffer_store_dwordx4 v[{PK+8}:{PK+11}], v8, s[16:19], s55 offen
    buffer_store_dwordx4 v[{PK+12}:{PK+15}], v8, s[16:19], s55 offen offset:16
    s_endpgm
    """)
```

```python
from common import *

CH_TAB = 72*512
F_ROW0 = 56
KC_BASE = 64
KC_COPY = 4160
KC_CH = 4*KC_COPY
UT_BASE = KC_BASE + 4*KC_CH
UT_CH = 4608
RED_BASE = UT_BASE + 4*UT_CH

def g_row_index(a_, c):
    if a_ < 2:
        rg = 2*a_ + (c >> 2); e = c & 3
        return 0*16 + 4*rg + e
    if a_ >= 8:
        rg = (a_-8) >> 1; e = 2*((a_-8) & 1) + (1 if c == 8 else 0)
        return 1*16 + 4*rg + e
    if a_ >= 4:
        rg = a_-4; e = {0: 0, 4: 1, 8: 2}[c]
        return 2*16 + 4*rg + e
    rg = a_-2
    if c == 8: return 2*16 + 4*rg + 3
    return 3*16 + 4*rg + c//2

def gen_B(a):
    a("""
    s_load_dwordx2 s[8:9], s[0:1], 0          ; x
    s_load_dwordx4 s[20:23], s[0:1], 80
    s_load_dwordx4 s[24:27], s[0:1], 96
    s_load_dwordx4 s[28:31], s[0:1], 112
    s_load_dwordx2 s[16:17], s[0:1], 152      ; ws
    v_and_b32 v1, 63, v0
    v_lshrrev_b32 v2, 6, v0
    s_and_b32 s33, s2, 7                      ; xcd j
    v_readfirstlane_b32 s32, v2               ; wave
    s_lshr_b32 s34, s2, 3                     ; i (0..15)
    s_lshl_b32 s35, s33, 6
    s_lshl_b32 s36, s34, 2
    s_add_u32 s35, s35, s36                   ; d0
    """)
    W, I, D0 = 32, 34, 35
    a(f"""
    s_lshr_b32 s37, s{W}, 1                   ; ch
    s_and_b32 s38, s{W}, 1
    s_add_u32 s39, s{D0}, s37                 ; d = d0 + ch
    v_and_b32 v3, 127, v0                     ; mode n
    s_lshl_b32 s40, s39, 8                    ; d*256 bytes
    v_lshl_add_u32 v4, v3, 1, s40
    s_lshl_b32 s41, s39, 1
    v_mov_b32 v5, s41                         ; d*2
    s_waitcnt lgkmcnt(0)
    """)
    CH, PAR, D = 37, 38, 39
    srd(a, 8, 0x200000)
    srd(a, 16, WS_SIZE)
    vLA, vAI, vCR, vCI, vLD, vDS = 8, 9, 10, 11, 12, 13
    a(f"""
    global_load_ushort v{vLA}, v4, s[20:21]
    global_load_ushort v{vAI}, v4, s[22:23]
    global_load_ushort v{vLD}, v5, s[28:29]
    global_load_ushort v{vCR}, v4, s[24:25]
    global_load_ushort v{vCI}, v4, s[26:27]
    global_load_ushort v{vDS}, v5, s[30:31]
    """)
    a(f"""
    s_lshl_b32 s42, s{I}, 7
    s_lshl_b32 s43, s{W}, 4
    s_add_u32 s42, s42, s43
    v_and_b32 v6, 15, v1
    v_add_u32 v6, s42, v6
    v_lshlrev_b32 v6, 10, v6
    s_lshl_b32 s44, s{D0}, 1                  ; d0*2 bytes
    buffer_load_dword v14, v6, s[8:11], s44 offen
    """)
    U = 16
    a("v_lshlrev_b32 v7, 12, v0")
    for j in range(4):
        a(f"buffer_load_dwordx2 v[{U+2*j}:{U+2*j+1}], v7, s[8:11], s44 offen offset:{j*1024}")
    WA = 24
    a(f"""
    s_mul_i32 s45, s{CH}, {CH_TAB}
    v_lshlrev_b32 v3, 2, v3
    """)
    for k in range(8):
        a(f"v_xor_b32 v{WA+k}, {k<<5}, v3")
        a(f"v_add_u32 v{WA+k}, s45, v{WA+k}")
    a("s_waitcnt vmcnt(5)")
    ER, PH, CRr, CIi = 32, 33, 34, 35
    T0, T1, T2 = 36, 37, 38
    a(f"""
    v_lshlrev_b32 v{vLA}, 16, v{vLA}
    v_lshlrev_b32 v{vAI}, 16, v{vAI}
    v_lshlrev_b32 v{vLD}, 16, v{vLD}
    v_lshlrev_b32 v{vCR}, 16, v{vCR}
    v_lshlrev_b32 v{vCI}, 16, v{vCI}
    v_lshlrev_b32 v{vDS}, 16, v{vDS}
    v_mul_f32 v{vLA}, {LOG2E:#x}, v{vLA}
    v_mul_f32 v{vLD}, {LOG2E:#x}, v{vLD}
    v_exp_f32 v{vLA}, v{vLA}
    v_exp_f32 v{vLD}, v{vLD}
    """)
    rbf(a, vLA, vLA)
    rbf(a, vLD, vLD)
    a(f"""
    v_mul_f32 v{ER}, v{vLA}, v{vLD}
    v_mul_f32 v{PH}, v{vAI}, v{vLD}
    v_mul_f32 v{ER}, {LOG2E ^ 0x80000000:#x}, v{ER}
    v_mul_f32 v{PH}, {INV2PI:#x}, v{PH}
    v_add_f32 v{vLD}, v{vLD}, v{vLD}
    v_mul_f32 v{CRr}, v{vCR}, v{vLD}
    v_mul_f32 v{CIi}, v{vCI}, v{vLD}
    """)
    W1r, W1i, W2r, W2i, W4r, W4i, W8r, W8i, WKr, WKi = 40, 41, 42, 43, 44, 45, 46, 47, 48, 49
    cexp(a, W1r, W1i, ER, PH, '1.0', T0, T1)
    cexp(a, W8r, W8i, ER, PH, fhex(8.0), T0, T1)
    cexp(a, WKr, WKi, ER, PH, fhex(128.0), T0, T1)
    csq(a, W2r, W2i, W1r, W1i, T0)
    csq(a, W4r, W4i, W2r, W2i, T0)
    PK = [50, 51, 52, 53]; pkc = [0]
    def put(row, r, i, neg=False):
        p = PK[pkc[0] % 4]; pkc[0] += 1
        a(f"v_cvt_pk_bf16_f32 v{p}, v{r}, {'-' if neg else ''}v{i}")
        a(f"ds_write_b32 v{WA + (row & 7)}, v{p} offset:{row*512}")
    Fr, Fi = 54, 55
    a(f"v_mov_b32 v{Fr}, 1.0"); a(f"v_mov_b32 v{Fi}, 0")
    put(F_ROW0+0, Fr, Fi, True)
    put(F_ROW0+1, W8r, W8i, True)
    Rr, Ri = CRr, CIi
    Sr, Si = 56, 57
    fstate = [1, W8r, W8i]
    def fstep():
        f, pr, pi = fstate
        if f >= 15: return
        cmul(a, Fr, Fi, pr, pi, W8r, W8i, T0, T1) if (pr, pi) != (Fr, Fi) else cmul(a, Fr, Fi, Fr, Fi, W8r, W8i, T0, T1)
        fstate[0] = f+1; fstate[1] = Fr; fstate[2] = Fi
        put(F_ROW0+f+1, Fr, Fi, True)
    for a_ in range(16):
        if a_ > 0:
            cmul(a, Rr, Ri, Rr, Ri, WKr, WKi, T0, T1)
        put(g_row_index(a_, 0), Rr, Ri)
        if a_ < 2:   cs, (wr, wi) = list(range(1, 8)), (W1r, W1i)
        elif a_ < 4: cs, (wr, wi) = [2, 4, 6, 8], (W2r, W2i)
        elif a_ < 8: cs, (wr, wi) = [4, 8], (W4r, W4i)
        else:        cs, (wr, wi) = [8], (W8r, W8i)
        pr, pi = Rr, Ri
        for c in cs:
            cmul(a, Sr, Si, pr, pi, wr, wi, T2, T1)
            pr, pi = Sr, Si
            put(g_row_index(a_, c), Sr, Si)
        fstep()
    while fstate[0] < 15: fstep()
    a("s_waitcnt lgkmcnt(0)")
    a("s_barrier")
    RA = 24
    a(f"""
    v_and_b32 v2, 15, v1                      ; row16
    v_lshrrev_b32 v3, 4, v1                   ; kg
    v_and_b32 v4, 7, v2
    v_lshlrev_b32 v4, 1, v4
    v_xor_b32 v4, v4, v3
    v_lshlrev_b32 v4, 4, v4
    v_lshl_add_u32 v4, v2, 9, v4
    v_add_u32 v4, s45, v4
    """)
    for s_ in range(8):
        a(f"v_xor_b32 v{RA+s_}, {s_*64}, v4")
    a(f"s_lshl_b32 s46, s{PAR}, 14")
    GA = 40
    for s_ in range(8):
        a(f"v_add_u32 v{GA+s_}, s46, v{RA+s_}")
    D0_, D1_ = 56, 60
    for r in range(8): a(f"v_mov_b32 v{D0_+r}, 0")
    FF, G0, G1 = [64, 76], [68, 80], [72, 84]
    def rd(s_, b):
        a(f"ds_read_b128 v[{FF[b]}:{FF[b]+3}], v{RA+s_} offset:{F_ROW0*512}")
        a(f"ds_read_b128 v[{G0[b]}:{G0[b]+3}], v{GA+s_}")
        a(f"ds_read_b128 v[{G1[b]}:{G1[b]+3}], v{GA+s_} offset:8192")
    rd(0, 0)
    for s_ in range(8):
        b = s_ & 1
        if s_ < 7:
            rd(s_+1, b ^ 1); a("s_waitcnt lgkmcnt(3)")
        else: a("s_waitcnt lgkmcnt(0)")
        a(f"v_mfma_f32_16x16x32_bf16 v[{D0_}:{D0_+3}], v[{G0[b]}:{G0[b]+3}], v[{FF[b]}:{FF[b]+3}], v[{D0_}:{D0_+3}]")
        a(f"v_mfma_f32_16x16x32_bf16 v[{D1_}:{D1_+3}], v[{G1[b]}:{G1[b]+3}], v[{FF[b]}:{FF[b]+3}], v[{D1_}:{D1_+3}]")
    a("s_barrier")
    a(f"""
    s_mul_i32 s47, s{CH}, {KC_CH}
    s_add_u32 s47, s47, {KC_BASE}
    s_cmp_eq_u32 s{PAR}, 0
    s_cbranch_scc0 L_B_half1
    """)
    P = 64
    a(f"""
    v_cvt_pk_bf16_f32 v{P}, v{D0_+3}, v{D0_+2}
    v_cvt_pk_bf16_f32 v{P+1}, v{D0_+1}, v{D0_}
    v_lshrrev_b32 v4, 1, v3
    v_lshlrev_b32 v4, 8, v4                   ; 256*(rg>>1)
    v_lshl_add_u32 v4, v2, 4, v4              ; +16 f
    v_and_b32 v5, 1, v3
    v_lshl_add_u32 v4, v5, 3, v4              ; +8*(rg&1)
    v_sub_u32 v4, {2044*2}, v4
    v_add_u32 v4, s47, v4
    ds_write_b64 v4, v[{P}:{P+1}]
    v_and_b32 v5, 1, v2
    v_cmp_eq_u32 vcc, 1, v5
    v_lshlrev_b32 v4, 9, v3
    v_lshl_add_u32 v4, v2, 4, v4
    v_sub_u32 v4, {4080 - 16*16*8}, v4
    v_add_u32 v4, s47, v4
    v_cndmask_b32 v6, v{D1_}, v{D1_+1}, vcc
    v_cndmask_b32 v7, v{D1_+2}, v{D1_+3}, vcc
    v_cvt_pk_bf16_f32 v{P+4}, v{D1_+1}, v{D1_+1}
    v_cvt_pk_bf16_f32 v{P+5}, v{D1_+1}, v6
    v_cvt_pk_bf16_f32 v{P+6}, v{D1_}, v{D1_}
    v_mov_b32 v{P+7}, v{P+6}
    v_add_u32 v5, -256, v4
    ds_write_b128 v4, v[{P+4}:{P+7}]
    v_cvt_pk_bf16_f32 v{P+8}, v{D1_+3}, v{D1_+3}
    v_cvt_pk_bf16_f32 v{P+9}, v{D1_+3}, v7
    v_cvt_pk_bf16_f32 v{P+10}, v{D1_+2}, v{D1_+2}
    v_mov_b32 v{P+11}, v{P+10}
    ds_write_b128 v5, v[{P+8}:{P+11}]
    s_branch L_B_exp1done
    L_B_half1:
    v_lshlrev_b32 v4, 8, v3
    v_lshl_add_u32 v4, v2, 4, v4
    v_sub_u32 v5, {4080 - 16*16*4}, v4
    v_add_u32 v5, s47, v5
    v_cvt_pk_bf16_f32 v{P}, v{D0_+2}, v{D0_+2}
    v_cvt_pk_bf16_f32 v{P+1}, v{D0_+1}, v{D0_+1}
    v_cvt_pk_bf16_f32 v{P+2}, v{D0_+1}, v{D0_}
    v_cvt_pk_bf16_f32 v{P+3}, v{D0_}, v{D0_}
    ds_write_b128 v5, v[{P}:{P+3}]
    v_sub_u32 v5, {4080 - 16*16*2}, v4
    v_add_u32 v5, s47, v5
    v_cvt_pk_bf16_f32 v{P+4}, v{D0_+3}, v{D1_+3}
    v_cvt_pk_bf16_f32 v{P+5}, v{D1_+2}, v{D1_+2}
    v_cvt_pk_bf16_f32 v{P+6}, v{D1_+2}, v{D1_+1}
    v_cvt_pk_bf16_f32 v{P+7}, v{D1_}, v{D1_}
    s_mov_b32 exec_hi, 0
    ds_write_b128 v5, v[{P+4}:{P+7}]
    v_mov_b32 v{P+8}, 0
    v_mov_b32 v{P+9}, 0
    v_mov_b32 v{P+10}, 0
    v_mov_b32 v{P+11}, 0
    v_lshlrev_b32 v5, 4, v1
    v_add_u32 v5, s47, v5
    s_mov_b64 exec, 3
    ds_write_b128 v5, v[{P+8}:{P+11}] offset:4096
    s_mov_b64 exec, -1
    L_B_exp1done:
    """)
    a(f"""
    v_mov_b32 v{P+12}, 0
    v_mov_b32 v{P+13}, 0
    v_mov_b32 v{P+14}, 0
    v_mov_b32 v{P+15}, 0
    v_lshrrev_b32 v4, 5, v0                   ; ch = t>>5 (t<128)
    v_mul_u32_u24 v4, {UT_CH}, v4
    v_and_b32 v5, 31, v0
    v_lshl_add_u32 v4, v5, 4, v4
    v_add_u32 v4, {UT_BASE}, v4
    v_cmp_gt_u32 vcc, 128, v0
    s_and_saveexec_b64 s[52:53], vcc
    s_cbranch_execz L_B_nouz
    ds_write_b128 v4, v[{P+12}:{P+15}]
    L_B_nouz:
    s_mov_b64 exec, s[52:53]
    s_waitcnt vmcnt(0)
    s_mov_b32 s48, 0x05040100
    s_mov_b32 s49, 0x07060302
    v_lshlrev_b32 v4, 3, v0
    v_add_u32 v4, {UT_BASE + 512}, v4
    """)
    for ch in range(4):
        dw = ch >> 1; sel = 48 + (ch & 1)
        q = P + 16 + 2*(ch & 1)
        a(f"v_perm_b32 v{q}, v{U+2+dw}, v{U+dw}, s{sel}")
        a(f"v_perm_b32 v{q+1}, v{U+6+dw}, v{U+4+dw}, s{sel}")
        a(f"ds_write_b64 v4, v[{q}:{q+1}] offset:{ch*UT_CH}")
    a("s_waitcnt lgkmcnt(0)")
    a("s_barrier")
    a(f"""
    v_and_b32 v4, 127, v0
    v_lshlrev_b32 v4, 4, v4
    v_add_u32 v4, s47, v4
    """)
    def stage2(off):
        Dm = 64
        a(f"ds_read_b128 v[68:71], v4 offset:{off}")
        a(f"v_add_u32 v5, {off - 8}, v4")
        a(f"ds_read_b64 v[66:67], v5")
        a("s_waitcnt lgkmcnt(0)")
        for j in range(-1, 4):
            a(f"v_alignbit_b32 v{73+j}, v{68+j}, v{68+j-1}, 16")
        a("v_mov_b32 v80, v73"); a("v_mov_b32 v81, v74"); a("v_mov_b32 v82, v75"); a("v_mov_b32 v83, v76")
        a(f"ds_write_b128 v4, v[80:83] offset:{off + KC_COPY}")
        a(f"ds_write_b128 v4, v[72:75] offset:{off + 3*KC_COPY}")
        a("v_mov_b32 v84, v67"); a("v_mov_b32 v85, v68"); a("v_mov_b32 v86, v69"); a("v_mov_b32 v87, v70")
        a(f"ds_write_b128 v4, v[84:87] offset:{off + 2*KC_COPY}")
    stage2(0)
    stage2(2048)
    a(f"""
    v_and_b32 v5, 127, v0
    v_cmp_gt_u32 vcc, 2, v5
    s_and_saveexec_b64 s[52:53], vcc
    s_cbranch_execz L_B_nost3
    """)
    stage2(4096)
    a("""
    L_B_nost3:
    s_mov_b64 exec, s[52:53]
    s_waitcnt lgkmcnt(0)
    s_barrier
    """)
    UF = 96
    ACC = 224
    AF = [64, 68, 72, 76]
    a(f"""
    s_mul_i32 s50, s{CH}, {UT_CH}
    s_lshl_b32 s51, s{PAR}, 6
    s_sub_u32 s50, s50, s51
    s_add_u32 s50, s50, {UT_BASE + 512 - 64*6 - 32}
    v_lshlrev_b32 v4, 5, v2
    v_lshl_add_u32 v4, v3, 4, v4
    v_add_u32 v4, s50, v4
    """)
    for u in range(32):
        a(f"ds_read_b128 v[{UF+4*u}:{UF+4*u+3}], v4 offset:{128*u}")
    a(f"""
    v_add_u32 v5, 1, v2
    v_and_b32 v6, 3, v5
    v_mul_u32_u24 v6, {KC_COPY}, v6
    v_lshrrev_b32 v5, 2, v5
    v_lshlrev_b32 v5, 3, v5
    v_sub_u32 v6, v6, v5
    v_lshl_add_u32 v6, v3, 4, v6
    s_sub_u32 s50, s47, s51
    s_add_u32 s50, s50, {2*2032 - 128*31}
    v_add_u32 v6, s50, v6
    """)
    for r in range(32): a(f"v_mov_b32 v{ACC+r}, 0")
    def ard(tp):
        b = AF[tp & 3]
        off = 128*(31-tp)
        a(f"ds_read_b64 v[{b}:{b+1}], v6 offset:{off}")
        a(f"ds_read_b64 v[{b+2}:{b+3}], v6 offset:{off+8}")
    a("s_waitcnt lgkmcnt(0)")
    ard(0); ard(1); ard(2)
    for tp in range(32):
        if tp + 3 < 32:
            ard(tp+3); a("s_waitcnt lgkmcnt(6)")
        else:
            a(f"s_waitcnt lgkmcnt({2*(31-tp)})")
        b = AF[tp & 3]
        for tau in range(tp >> 2, 8):
            u = 4*tau - tp + 3
            a(f"v_mfma_f32_16x16x32_bf16 v[{ACC+4*tau}:{ACC+4*tau+3}], v[{b}:{b+3}], v[{UF+4*u}:{UF+4*u+3}], v[{ACC+4*tau}:{ACC+4*tau+3}]")
    a(f"""
    s_cmp_eq_u32 s{PAR}, 1
    s_cbranch_scc0 L_B_noswap
    """)
    for r in range(16): a(f"v_swap_b32 v{ACC+r}, v{ACC+16+r}")
    a(f"""
    L_B_noswap:
    s_lshl_b32 s50, s{W}, 12
    s_add_u32 s50, s50, {RED_BASE}
    v_lshlrev_b32 v4, 4, v1
    v_add_u32 v5, s50, v4
    s_xor_b32 s50, s{W}, 1
    s_lshl_b32 s50, s50, 12
    s_add_u32 s50, s50, {RED_BASE}
    v_add_u32 v4, s50, v4
    """)
    for j in range(4):
        a(f"ds_write_b128 v5, v[{ACC+16+4*j}:{ACC+16+4*j+3}] offset:{1024*j}")
    a(f"""
    s_mul_i32 s50, s{CH}, {UT_CH}
    s_lshl_b32 s51, s{PAR}, 11                ; 4par*256*2
    s_add_u32 s50, s50, s51
    s_add_u32 s50, s50, {UT_BASE + 512}
    v_lshlrev_b32 v6, 5, v2
    v_lshl_add_u32 v6, v3, 3, v6              ; (16 i + 4 rg)*2
    v_add_u32 v7, s50, v6
    """)
    UE = 64
    for j in range(4):
        a(f"ds_read_b64 v[{UE+2*j}:{UE+2*j+1}], v7 offset:{512*j}")
    a("s_waitcnt lgkmcnt(0)")
    a("s_barrier")
    PR = 96
    for j in range(4):
        a(f"ds_read_b128 v[{PR+4*j}:{PR+4*j+3}], v4 offset:{1024*j}")
    a(f"""
    s_lshl_b32 s50, s{D}, 12
    s_add_u32 s50, s50, s51
    s_add_u32 s50, s50, {WS_BT:#x}
    s_waitcnt lgkmcnt(0)
    """)
    for j in range(4):
        y = ACC + 4*j
        for e in range(4): a(f"v_add_f32 v{y+e}, v{y+e}, v{PR+4*j+e}")
        a(f"v_cvt_pk_bf16_f32 v72, v{y}, v{y+1}")
        a(f"v_cvt_pk_bf16_f32 v73, v{y+2}, v{y+3}")
        a(f"v_lshlrev_b32 v74, 16, v{UE+2*j}")
        a(f"v_and_b32 v75, 0xffff0000, v{UE+2*j}")
        a(f"v_lshlrev_b32 v76, 16, v{UE+2*j+1}")
        a(f"v_and_b32 v77, 0xffff0000, v{UE+2*j+1}")
        for e in range(4): a(f"v_mul_f32 v{74+e}, v{74+e}, v{vDS}")
        a("v_cvt_pk_bf16_f32 v78, v74, v75")
        a("v_cvt_pk_bf16_f32 v79, v76, v77")
        a("v_lshlrev_b32 v74, 16, v72"); a("v_and_b32 v75, 0xffff0000, v72")
        a("v_lshlrev_b32 v76, 16, v73"); a("v_and_b32 v77, 0xffff0000, v73")
        a("v_lshlrev_b32 v80, 16, v78"); a("v_and_b32 v81, 0xffff0000, v78")
        a("v_lshlrev_b32 v82, 16, v79"); a("v_and_b32 v83, 0xffff0000, v79")
        for e in range(4): a(f"v_add_f32 v{74+e}, v{74+e}, v{80+e}")
        a(f"v_cvt_pk_bf16_f32 v{84+2*j}, v74, v75")
        a(f"v_cvt_pk_bf16_f32 v{85+2*j}, v76, v77")
        a(f"buffer_store_dwordx2 v[{84+2*j}:{85+2*j}], v6, s[16:19], s50 offen offset:{512*j}")
    a("s_endpgm")
```

```python
from common import *

MISC = 114688
LAMZ = MISC
HH = MISC + 8192
STAGE = 131072
RED = 16384

def phase2():
    a = Asm()
    a("""
    s_cmp_ge_u32 s2, 256
    s_cbranch_scc1 L_P2_end
    s_load_dwordx2 s[8:9], s[0:1], 0          ; x
    s_load_dwordx4 s[28:31], s[0:1], 40
    s_load_dwordx2 s[16:17], s[0:1], 152      ; ws
    s_load_dwordx2 s[20:21], s[0:1], 136      ; out
    s_load_dwordx2 s[24:25], s[0:1], 64       ; A_Dskip
    v_and_b32 v1, 63, v0
    v_lshrrev_b32 v2, 6, v0
    s_and_b32 s33, s2, 7                      ; j
    v_readfirstlane_b32 s32, v2               ; w
    s_lshr_b32 s34, s2, 3                     ; idx
    s_lshr_b32 s35, s34, 3                    ; idx>>3
    s_and_b32 s36, s34, 7                     ; dtile
    s_lshl_b32 s37, s33, 2
    s_add_u32 s37, s37, s35                   ; rt
    s_lshr_b32 s38, s37, 1                    ; chunk c
    s_and_b32 s39, s37, 1                     ; half
    s_lshl_b32 s40, s35, 1
    s_add_u32 s40, s40, s36
    s_and_b32 s40, s40, 7                     ; rot
    s_lshl_b32 s41, s37, 6                    ; l0
    s_lshl_b32 s42, s36, 6                    ; d0
    """)
    W, C, HALF, ROT, L0, D0 = 32, 38, 39, 40, 41, 42
    WI, WJ, KH = 43, 44, 45
    a(f"""
    s_and_b32 s{WI}, s{W}, 1
    s_bfe_u32 s{WJ}, s{W}, 0x10001
    s_lshr_b32 s{KH}, s{W}, 2
    """)
    vH, vC0, vC1, vSW, vTR, vCB, vM, vTb, vTb2 = 4, 5, 6, 7, 8, 9, 13, 14, 15
    a(f"""
    v_lshrrev_b32 v2, 3, v0                   ; ps
    v_and_b32 v3, 7, v0                       ; c8
    v_lshlrev_b32 v{vH}, 12, v2
    v_lshl_add_u32 v{vH}, v3, 4, v{vH}
    v_bfe_u32 v26, v2, 1, 1
    v_lshlrev_b32 v26, 2, v26
    v_xor_b32 v26, v26, v3
    v_lshlrev_b32 v26, 4, v26
    v_lshl_add_u32 v{vSW}, v2, 7, v26
    v_add_u32 v{vSW}, {STAGE}, v{vSW}
    v_lshlrev_b32 v{vM}, 3, v3
    v_add_u32 v{vM}, 1, v{vM}
    v_cvt_f32_u32 v{vM}, v{vM}
    v_lshlrev_b32 v{vTb}, 4, v2
    v_add_u32 v{vTb}, {LAMZ}, v{vTb}
    v_lshlrev_b32 v{vTb2}, 3, v2
    v_add_u32 v{vTb2}, {HH}, v{vTb2}
    """)
    a(f"""
    v_lshrrev_b32 v26, 3, v1                  ; r8
    v_and_b32 v27, 7, v1
    v_lshrrev_b32 v28, 1, v26
    v_xor_b32 v27, v27, v28
    v_xor_b32 v28, 4, v27
    v_lshlrev_b32 v26, 10, v26
    v_lshl_add_u32 v{vC0}, v27, 4, v26
    v_lshl_add_u32 v{vC1}, v28, 4, v26
    v_add_u32 v{vC1}, 0x2000, v{vC1}
    s_and_b32 s46, s{W}, 3
    s_lshl_b32 s46, s46, 4
    s_add_u32 s46, s46, s{D0}
    s_lshl_b32 s46, s46, 10
    v_add_u32 v{vC0}, s46, v{vC0}
    v_add_u32 v{vC1}, s46, v{vC1}
    s_lshl_b32 s50, s{W}, 11                  ; w*2048
    """)
    EB = 96
    for r in range(30): a(f"v_mov_b32 v{EB+r}, 0")
    a("s_waitcnt lgkmcnt(0)")
    srd(a, 8, 0x200000)
    srd(a, 16, WS_SIZE)
    srd(a, 20, 0x400000)
    a(f"""
    s_cmp_lt_u32 s{W}, 4
    s_cselect_b32 s12, s28, s30
    s_cselect_b32 s13, s29, s31
    """)
    srd(a, 12, 0x80000)
    LZ = 16
    a(f"""
    v_lshlrev_b32 v26, 4, v0
    v_add_u32 v26, {WS_LAM:#x}, v26
    buffer_load_dwordx4 v[{LZ}:{LZ+3}], v26, s[16:19], 0 offen
    v_lshlrev_b32 v27, 3, v0
    s_lshl_b32 s47, s{C}, 12
    s_add_u32 s47, s47, {WS_E:#x}
    """)
    for i in range(15):
        a(f"s_cmp_gt_u32 s{C}, {i}")
        a("s_cbranch_scc0 L_P2_Edone")
        a("s_sub_u32 s47, s47, 4096")
        a(f"buffer_load_dwordx2 v[{EB+2*i}:{EB+2*i+1}], v27, s[16:19], s47 offen")
    a.label("L_P2_Edone")
    HB = 128
    a(f"s_lshl_b32 s48, s{L0}, 1")
    def kc(i, sreg):
        a(f"s_add_u32 s{sreg}, s{ROT}, {i}")
        a(f"s_and_b32 s{sreg}, s{sreg}, 7")
    def issue_h(i):
        kc(i, 51)
        a("s_lshl_b32 s52, s51, 18")
        a("s_add_u32 s52, s52, s48")
        a("s_add_u32 s53, s52, 0x200000")
        a(f"buffer_load_dwordx4 v[{HB+8*i}:{HB+8*i+3}], v{vH}, s[16:19], s52 offen")
        a(f"buffer_load_dwordx4 v[{HB+8*i+4}:{HB+8*i+7}], v{vH}, s[16:19], s53 offen")
    def issue_c(i):
        kc(i, 51)
        a("s_lshl_b32 s51, s51, 7")
        slot = i if i < 7 else 0
        a(f"s_add_u32 m0, s50, {slot*16384}")
        a(f"buffer_load_dwordx4 v{vC0}, s[12:15], s51 offen lds")
        a(f"s_add_u32 m0, s50, {slot*16384+1024}")
        a(f"buffer_load_dwordx4 v{vC1}, s[12:15], s51 offen lds")
    for i in range(7):
        issue_h(i); issue_c(i)
    issue_h(7)
    XE, BE, GE, DK = 64, 72, 76, 84
    vXo, vBo, vGo, vOo = 85, 86, 87, 88
    a(f"""
    v_lshrrev_b32 v26, 5, v1                  ; hi
    v_and_b32 v27, 31, v1                     ; n
    s_lshl_b32 s54, s{WI}, 5
    s_lshl_b32 s55, s{KH}, 3
    s_add_u32 s54, s54, s55
    v_lshl_add_u32 v26, v26, 4, s54
    s_lshl_b32 s55, s{WJ}, 5
    v_add_u32 v27, s55, v27
    v_lshlrev_b32 v28, 1, v27
    v_lshl_add_u32 v{vXo}, v26, 10, v28
    v_lshlrev_b32 v28, 1, v26
    v_lshl_add_u32 v{vBo}, v27, 12, v28
    v_lshlrev_b32 v{vGo}, 2, v26
    v_lshlrev_b32 v28, 2, v27
    v_lshl_add_u32 v{vOo}, v26, 11, v28
    v_add_u32 v28, s{D0}, v27
    v_lshlrev_b32 v28, 1, v28
    s_lshl_b32 s54, s{L0}, 10
    s_lshl_b32 s55, s{D0}, 1
    s_add_u32 s54, s54, s55
    """)
    for e in range(8):
        a(f"buffer_load_ushort v{XE+e}, v{vXo}, s[8:11], s54 offen")
        if e < 7: a("s_add_u32 s54, s54, 1024")
    a(f"""
    s_lshl_b32 s54, s{D0}, 12
    s_add_u32 s54, s54, s48
    s_add_u32 s54, s54, {WS_BT:#x}
    buffer_load_dwordx4 v[{BE}:{BE+3}], v{vBo}, s[16:19], s54 offen
    s_lshl_b32 s54, s{L0}, 2
    s_add_u32 s54, s54, {WS_G:#x}
    buffer_load_dwordx4 v[{GE}:{GE+3}], v{vGo}, s[16:19], s54 offen
    buffer_load_dwordx4 v[{GE+4}:{GE+7}], v{vGo}, s[16:19], s54 offen offset:16
    global_load_ushort v{DK}, v28, s[24:25]
    """)
    a(f"""
    v_and_b32 v26, 15, v1
    v_lshrrev_b32 v27, 2, v26                 ; r
    v_and_b32 v26, 3, v1                      ; c'
    v_lshrrev_b32 v28, 4, v1                  ; G
    v_and_b32 v29, 1, v28
    v_lshl_add_u32 v26, v29, 2, v26           ; q = 4(G&1)+c'
    v_and_b32 v29, 1, v26
    v_lshlrev_b32 v29, 2, v29
    v_lshrrev_b32 v26, 1, v26
    v_add_u32 v26, v26, v29                   ; lambda
    v_lshlrev_b32 v26, 3, v26                 ; 8*lambda
    v_lshrrev_b32 v29, 1, v27                 ; r>>1
    v_xor_b32 v29, s{WI}, v29
    v_lshl_add_u32 v26, v29, 6, v26           ; + 64*(wi ^ (r>>1))
    v_lshrrev_b32 v28, 1, v28                 ; kg
    v_lshl_add_u32 v27, v28, 3, v27           ; 8kg + r
    v_lshl_add_u32 v26, v27, 7, v26
    s_lshl_b32 s54, s{KH}, 13                 ; 64*kh*128
    s_add_u32 s54, s54, {STAGE}
    v_add_u32 v{vTR}, s54, v26
    v_and_b32 v26, 31, v1                     ; n
    v_lshrrev_b32 v27, 5, v1                  ; kg
    v_bfe_u32 v28, v26, 1, 3
    v_xor_b32 v28, v28, v27
    v_lshlrev_b32 v28, 4, v28
    v_lshl_add_u32 v28, v26, 7, v28
    s_lshl_b32 s54, s{KH}, 13
    s_lshl_b32 s55, s{WJ}, 12
    s_add_u32 s54, s54, s55
    v_add_u32 v{vCB}, s54, v28
    """)
    for s_ in range(1, 4): a(f"v_xor_b32 v{vCB+s_}, {32*s_}, v{vCB}")
    ACC = 48
    for r in range(16): a(f"v_mov_b32 v{ACC+r}, 0")
    T0, T1, T2, T3 = 26, 27, 28, 29
    LTr, LTi, L64r, L64i, Hr, Hi = 20, 21, 22, 23, 24, 25
    a("s_waitcnt vmcnt(42)")
    csq(a, LTr, LTi, LZ+2, LZ+3, T0)
    for _ in range(5): csq(a, LTr, LTi, LTr, LTi, T0)
    a(f"v_mov_b32 v{L64r}, v{LTr}"); a(f"v_mov_b32 v{L64i}, v{LTi}")
    csq(a, LTr, LTi, LTr, LTi, T0)
    a(f"v_mov_b32 v{Hr}, v{EB+28}"); a(f"v_mov_b32 v{Hi}, v{EB+29}")
    for i in range(13, -1, -1):
        a(f"v_fma_f32 v{T0}, -v{LTi}, v{Hi}, v{EB+2*i}")
        a(f"v_fma_f32 v{T1}, v{LTi}, v{Hr}, v{EB+2*i+1}")
        a(f"v_fma_f32 v{Hr}, v{LTr}, v{Hr}, v{T0}")
        a(f"v_fma_f32 v{Hi}, v{LTr}, v{Hi}, v{T1}")
    a(f"s_cmp_eq_u32 s{HALF}, 1")
    a("s_cbranch_scc0 L_P2_nohalf")
    cmul(a, Hr, Hi, Hr, Hi, L64r, L64i, T0, T1)
    a.label("L_P2_nohalf")
    a(f"""
    v_lshlrev_b32 v{T0}, 4, v0
    v_add_u32 v{T0}, {LAMZ}, v{T0}
    ds_write_b128 v{T0}, v[{LZ}:{LZ+3}]
    v_lshlrev_b32 v{T1}, 3, v0
    v_add_u32 v{T1}, {HH}, v{T1}
    ds_write_b64 v{T1}, v[{Hr}:{Hi}]
    s_waitcnt lgkmcnt(0)
    s_barrier
    """)
    TZ, TH = 30, 34
    gr, gi = 42, 43
    A0, A1, B0, B1 = 44, 45, 46, 47
    def tbl_read(k):
        kc(k, 51)
        a("s_lshl_b32 s52, s51, 10")
        a("s_lshl_b32 s53, s51, 9")
        a(f"v_add_u32 v{T2}, s52, v{vTb}")
        a(f"v_add_u32 v{T3}, s53, v{vTb2}")
        a(f"ds_read_b128 v[{TZ}:{TZ+3}], v{T2}")
        a(f"ds_read_b64 v[{TH}:{TH+1}], v{T3}")
    def g0():
        cexp(a, gr, gi, TZ, TZ+1, f"v{vM}", T0, T1)
        cmul(a, gr, gi, gr, gi, TH, TH+1, T0, T1)
    lr, li = TZ+2, TZ+3
    def gstep():
        a(f"v_mul_f32 v{T0}, v{li}, v{gi}")
        a(f"v_mul_f32 v{T1}, v{li}, v{gr}")
        a(f"v_fma_f32 v{gr}, v{lr}, v{gr}, -v{T0}")
        a(f"v_fma_f32 v{gi}, v{lr}, v{gi}, v{T1}")
    def corr_pair(k, q):
        R, I = HB+8*k+q, HB+8*k+4+q
        a(f"v_lshlrev_b32 v{A0}, 16, v{R}")
        a(f"v_lshlrev_b32 v{B0}, 16, v{I}")
        a(f"v_and_b32 v{A1}, 0xffff0000, v{R}")
        a(f"v_and_b32 v{B1}, 0xffff0000, v{I}")
        a(f"v_add_f32 v{A0}, v{A0}, v{gr}")
        a(f"v_sub_f32 v{B0}, v{B0}, v{gi}")
        gstep()
        a(f"v_add_f32 v{A1}, v{A1}, v{gr}")
        a(f"v_sub_f32 v{B1}, v{B1}, v{gi}")
        if q < 3: gstep()
        a(f"v_cvt_pk_bf16_f32 v{R}, v{A0}, v{A1}")
        a(f"v_cvt_pk_bf16_f32 v{I}, v{B0}, v{B1}")
    def stage_write(k):
        off = (k & 1)*16384
        a(f"ds_write_b128 v{vSW}, v[{HB+8*k}:{HB+8*k+3}] offset:{off}")
        a(f"ds_write_b128 v{vSW}, v[{HB+8*k+4}:{HB+8*k+7}] offset:{off+8192}")
    FA, FB = 96, 112
    def frag_reads(i):
        slot = i if i < 7 else 0
        coff = (slot & 3)*16384
        for s_ in range(4):
            o = (i & 1)*16384 + s_*2048
            a(f"ds_read_b64_tr_b16 v[{FA+4*s_}:{FA+4*s_+1}], v{vTR} offset:{o}")
            a(f"ds_read_b64_tr_b16 v[{FA+4*s_+2}:{FA+4*s_+3}], v{vTR} offset:{o+512}")
            a(f"ds_read_b128 v[{FB+4*s_}:{FB+4*s_+3}], v{vCB+s_} offset:{coff}")
    def mfma(s_):
        a(f"v_mfma_f32_32x32x16_bf16 v[{ACC}:{ACC+15}], v[{FA+4*s_}:{FA+4*s_+3}], v[{FB+4*s_}:{FB+4*s_+3}], v[{ACC}:{ACC+15}]")
    tbl_read(0)
    a("s_waitcnt lgkmcnt(0)")
    g0()
    a("s_waitcnt vmcnt(40)")
    for q in range(4): corr_pair(0, q)
    stage_write(0)
    a("s_waitcnt vmcnt(38)")
    a("s_waitcnt lgkmcnt(0)")
    a("s_barrier")
    for i in range(8):
        if i in (4, 7):
            for s_ in range(4): a(f"v_xor_b32 v{vCB+s_}, 0x10000, v{vCB+s_}")
        if i == 1: issue_c(7)
        if i < 7:
            k = i + 1
            tbl_read(k)
            frag_reads(i)
            a("s_waitcnt lgkmcnt(12)")
            g0()
            extra = 2 if i >= 1 else 0
            hw = (42 - (4*k + 2) if k < 7 else 12) + extra
            a(f"s_waitcnt vmcnt({hw})")
            for q in range(4):
                corr_pair(k, q)
                a(f"s_waitcnt lgkmcnt({9 - 3*q})")
                mfma(q)
            stage_write(k)
            cw = (42 - (4*k + 4) + extra) if k < 7 else 0
            a(f"s_waitcnt vmcnt({cw})")
            a("s_waitcnt lgkmcnt(0)")
            a("s_barrier")
        else:
            frag_reads(i)
            for q in range(4):
                a(f"s_waitcnt lgkmcnt({9 - 3*q})")
                mfma(q)
    a(f"s_cmp_eq_u32 s{KH}, 1")
    a("s_cbranch_scc0 L_P2_noswap")
    for r in range(8): a(f"v_swap_b32 v{ACC+r}, v{ACC+8+r}")
    a.label("L_P2_noswap")
    a(f"""
    v_lshlrev_b32 v26, 4, v1
    s_lshl_b32 s54, s{W}, 11
    s_add_u32 s54, s54, {RED}
    v_add_u32 v27, s54, v26
    s_xor_b32 s54, s{W}, 4
    s_lshl_b32 s54, s54, 11
    s_add_u32 s54, s54, {RED}
    v_add_u32 v26, s54, v26
    ds_write_b128 v27, v[{ACC+8}:{ACC+11}]
    ds_write_b128 v27, v[{ACC+12}:{ACC+15}] offset:1024
    s_waitcnt lgkmcnt(0)
    s_barrier
    ds_read_b128 v[96:99], v26
    ds_read_b128 v[100:103], v26 offset:1024
    v_lshlrev_b32 v{DK}, 16, v{DK}
    """)
    XD, OM, BB = 104, 112, 120
    for e in range(8):
        a(f"v_lshlrev_b32 v{XE+e}, 16, v{XE+e}")
        a(f"v_mul_f32 v{XE+e}, v{XE+e}, v{DK}")
    for q in range(4):
        a(f"v_cvt_pk_bf16_f32 v26, v{XE+2*q}, v{XE+2*q+1}")
        a(f"v_lshlrev_b32 v{XD+2*q}, 16, v26")
        a(f"v_and_b32 v{XD+2*q+1}, 0xffff0000, v26")
        a(f"v_sub_f32 v27, 1.0, v{GE+2*q}")
        a(f"v_sub_f32 v28, 1.0, v{GE+2*q+1}")
        a(f"v_cvt_pk_bf16_f32 v26, v27, v28")
        a(f"v_lshlrev_b32 v{OM+2*q}, 16, v26")
        a(f"v_and_b32 v{OM+2*q+1}, 0xffff0000, v26")
        a(f"v_lshlrev_b32 v27, 16, v{BE+q}")
        a(f"v_and_b32 v28, 0xffff0000, v{BE+q}")
        a(f"v_mul_f32 v27, v27, v{OM+2*q}")
        a(f"v_mul_f32 v28, v28, v{OM+2*q+1}")
        a(f"v_cvt_pk_bf16_f32 v26, v27, v28")
        a(f"v_lshlrev_b32 v{BB+2*q}, 16, v26")
        a(f"v_and_b32 v{BB+2*q+1}, 0xffff0000, v26")
    a(f"""
    s_lshl_b32 s54, s{L0}, 11
    s_lshl_b32 s55, s{D0}, 2
    s_add_u32 s54, s54, s55
    s_waitcnt lgkmcnt(0)
    """)
    for e in range(8):
        a(f"v_add_f32 v{ACC+e}, v{ACC+e}, v{96+e}")
        a(f"v_fma_f32 v{ACC+e}, v{ACC+e}, 2.0, v{XD+e}")
        a(f"v_fma_f32 v{ACC+e}, v{GE+e}, v{ACC+e}, v{BB+e}")
        a(f"buffer_store_dword v{ACC+e}, v{vOo}, s[20:23], s54 offen")
        if e < 7: a("s_add_u32 s54, s54, 2048")
    a.label("L_P2_end")
    a("s_endpgm")
    return a.text()
```

```python
import sys
sys.path.insert(0, 'gen')
from common import *
import phase1a, phase1b
import importlib

NAME = "gated_mix__ssm_conv_s5__ssm_conv_s4d__prompt"
HEADER = open('cdna_kernels/' + NAME + '.s.ref').read().split('; Override launch geometry')[0]

def phase1():
    a = Asm()
    a("""
    s_cmp_ge_u32 s2, 256
    s_cbranch_scc1 L_P1_end
    s_cmp_ge_u32 s2, 128
    s_cbranch_scc1 L_P1_A
    """)
    phase1b.gen_B(a)
    a.label("L_P1_A")
    phase1a.gen_A(a)
    a.label("L_P1_end")
    a("s_endpgm")
    return a.text()

def build(phases=(1, 2)):
    s = HEADER
    if 1 in phases: s += "; @launch kernel=phase1_kernel grid=(256,1,1) block=(512,1,1) lds=163840\n"
    if 2 in phases: s += "; @launch kernel=phase2_kernel grid=(256,1,1) block=(512,1,1) lds=163840\n"
    s += '.amdgcn_target "amdgcn-amd-amdhsa--gfx950"\n.text\n'
    if 1 in phases: s += kernel_head("phase1_kernel") + phase1()
    if 2 in phases:
        import phase2
        s += kernel_head("phase2_kernel") + phase2.phase2()
    s += '.section .rodata,"a"\n.p2align 6\n'
    if 1 in phases: s += kernel_desc("phase1_kernel", 256) + ".p2align 6\n"
    if 2 in phases: s += kernel_desc("phase2_kernel", 256)
    return s

if __name__ == "__main__":
    out = sys.argv[1] if len(sys.argv) > 1 else 'p1.s'
    ph = tuple(int(c) for c in sys.argv[2]) if len(sys.argv) > 2 else (1, 2)
    import common
    common.STAMPS = len(sys.argv) > 3 and sys.argv[3] in ('stamps','dbg')
    common.DBGSTAMPS = len(sys.argv) > 3 and sys.argv[3] == 'dbg'
    open(out, 'w').write(build(ph))
    print("wrote", out)
```

```python
import hazard
LOG2E = 0x3fb8aa3b
INV2PI = 0x3e22f983

WS_HT  = 0
WS_BT  = 4 << 20
WS_E   = 6 << 20
WS_LAM = WS_E + 65536
WS_G   = WS_LAM + 8192
WS_STAMP = (6 << 20) + (512 << 10)
WS_SIZE = 7 << 20
STAMPS = False
DBGSTAMPS = False

class Asm:
    def __init__(self):
        self.lines = []
    def __call__(self, s):
        for l in s.strip('\n').split('\n'):
            l = l.strip()
            if not l: continue
            if l.endswith(':') and ' ' not in l: self.lines.append(l)
            else: self.lines.append('    ' + l)
    def label(self, n): self.lines.append(n + ':')
    def c(self, s): self.lines.append('    ; ' + s)
    def text(self, fix=True):
        L = hazard.fix(self.lines) if fix else self.lines
        return '\n'.join(L) + '\n'

def vr(b, n=1):
    return f"v{b}" if n == 1 else f"v[{b}:{b+n-1}]"
def sr(b, n=1):
    return f"s{b}" if n == 1 else f"s[{b}:{b+n-1}]"

def srd(a, base, size, ptr=None):
    if ptr is not None and ptr != base:
        a(f"s_mov_b32 s{base}, s{ptr}")
        a(f"s_mov_b32 s{base+1}, s{ptr+1}")
    a(f"s_mov_b32 s{base+2}, {size:#x}")
    a(f"s_mov_b32 s{base+3}, 0x20000")

def cmul(a, dr, di, ar, ai, br, bi, t0, t1):
    a(f"v_mul_f32 v{t0}, v{ai}, v{bi}")
    a(f"v_mul_f32 v{t1}, v{ai}, v{br}")
    if dr not in (ar, bi):
        a(f"v_fma_f32 v{dr}, v{ar}, v{br}, -v{t0}")
        a(f"v_fma_f32 v{di}, v{ar}, v{bi}, v{t1}")
    else:
        assert di not in (ar, br), (dr, di, ar, ai, br, bi)
        a(f"v_fma_f32 v{di}, v{ar}, v{bi}, v{t1}")
        a(f"v_fma_f32 v{dr}, v{ar}, v{br}, -v{t0}")

def csq(a, dr, di, ar, ai, t0):
    a(f"v_mul_f32 v{t0}, v{ai}, v{ai}")
    if di == ai:
        a(f"v_mul_f32 v{di}, v{ar}, v{ai}")
        a(f"v_add_f32 v{di}, v{di}, v{di}")
    else:
        a(f"v_add_f32 v{di}, v{ai}, v{ai}")
        a(f"v_mul_f32 v{di}, v{ar}, v{di}")
    a(f"v_fma_f32 v{dr}, v{ar}, v{ar}, -v{t0}")

def rbf(a, d, s):
    a(f"v_cvt_pk_bf16_f32 v{d}, v{s}, v{s}")
    a(f"v_and_b32 v{d}, 0xffff0000, v{d}")

def cexp(a, dr, di, er, ph, m, t0, t1):
    if m == '1.0':
        a(f"v_exp_f32 v{t0}, v{er}")
        a(f"v_fract_f32 v{t1}, v{ph}")
    else:
        a(f"v_mul_f32 v{t0}, {m}, v{er}")
        a(f"v_mul_f32 v{t1}, {m}, v{ph}")
        a(f"v_exp_f32 v{t0}, v{t0}")
        a(f"v_fract_f32 v{t1}, v{t1}")
    a(f"v_cos_f32 v{dr}, v{t1}")
    a(f"v_sin_f32 v{di}, v{t1}")
    a(f"v_mul_f32 v{dr}, v{dr}, v{t0}")
    a(f"v_mul_f32 v{di}, v{di}, v{t0}")

def fhex(x):
    import struct
    return "0x%08x" % struct.unpack("<I", struct.pack("<f", x))[0]

def kernel_head(name):
    return f""".globl {name}
.p2align 8
.type {name},@function
{name}:
"""
def kernel_desc(name, nv, acc=None, ns=100):
    acc = acc or nv
    return f""".amdhsa_kernel {name}
  .amdhsa_next_free_vgpr {nv}
  .amdhsa_next_free_sgpr {ns}
  .amdhsa_accum_offset {acc}
  .amdhsa_group_segment_fixed_size 0
  .amdhsa_kernarg_size 160
  .amdhsa_user_sgpr_count 2
  .amdhsa_user_sgpr_kernarg_segment_ptr 1
  .amdhsa_system_sgpr_workgroup_id_x 1
  .amdhsa_float_denorm_mode_32 3
.end_amdhsa_kernel
"""

def stamp(a, k):
    import common
    if common.STAMPS:
        a(f"s_memrealtime s[{76+2*k}:{77+2*k}]")

def stamp_flush(a, phase, n, wsrd=16, wavereg=32):
    import common
    if not common.STAMPS: return
    lab = f"L_stamp_skip_{phase}_{len(a.lines)}"
    a("s_waitcnt vmcnt(0)")
    stamp(a, n)
    a("s_waitcnt lgkmcnt(0)")
    a(f"s_cmp_eq_u32 s{wavereg}, 0")
    a(f"s_cbranch_scc0 {lab}")
    if common.DBGSTAMPS:
        lab2 = lab + "_d"
        a("s_and_b32 s74, s2, 127")
        a("s_cmp_eq_u32 s74, 0")
        a(f"s_cbranch_scc0 {lab2}")
        a("s_load_dwordx2 s[72:73], s[0:1], 144")
        a("s_waitcnt lgkmcnt(0)")
        a("s_lshr_b32 s74, s2, 7")
        a("s_lshl_b32 s74, s74, 5")
        a("v_mov_b32 v3, s74")
        a("s_mov_b64 exec, 1")
        for k in range(1, min(n+1, 9)):
            kk = k if k < 8 else n
            a(f"s_sub_u32 s74, s{76+2*kk}, s76")
            a("v_mov_b32 v4, s74")
            a(f"global_store_dword v3, v4, s[72:73] offset:{4*(k-1)}")
            a("s_nop 1")
        a("s_mov_b64 exec, -1")
        a(f"{lab2}:")
    a(f"s_lshl_b32 s75, s2, 7")
    a(f"s_add_u32 s75, s75, {WS_STAMP + phase*65536:#x}")
    a("v_mov_b32 v3, 0")
    a("s_mov_b64 exec, 1")
    for k in range(n+1):
        a(f"v_mov_b32 v4, s{76+2*k}")
        a(f"v_mov_b32 v5, s{77+2*k}")
        a(f"buffer_store_dwordx2 v[4:5], v3, s[{wsrd}:{wsrd+3}], s75 offen offset:{8*k}")
        a("s_nop 1")
    a("s_waitcnt vmcnt(0)")
    a(f"{lab}:")
```

```python
from common import *

def gen_A(a, dbg=False):
    stamp(a, 0)
    a("""
    s_load_dwordx2 s[8:9], s[0:1], 0          ; x
    s_load_dwordx4 s[28:31], s[0:1], 24
    s_load_dwordx2 s[16:17], s[0:1], 152      ; ws
    s_load_dwordx4 s[20:23], s[0:1], 8
    s_load_dwordx2 s[24:25], s[0:1], 56       ; A_log_dt
    s_load_dwordx2 s[26:27], s[0:1], 128      ; gate_w
    v_and_b32 v1, 63, v0
    v_lshrrev_b32 v2, 6, v0
    s_and_b32 s33, s2, 7
    v_readfirstlane_b32 s32, v2
    s_lshr_b32 s34, s2, 3
    s_sub_u32 s34, s34, 16                    ; i
    s_lshr_b32 s35, s34, 2                    ; i>>2
    s_and_b32 s36, s34, 3                     ; i&3
    s_lshr_b32 s37, s33, 1
    s_lshl_b32 s37, s37, 2
    s_add_u32 s37, s37, s35                   ; chunk c
    s_and_b32 s38, s33, 1
    s_lshl_b32 s38, s38, 2
    s_add_u32 s38, s38, s36                   ; slice s
    s_add_u32 s39, s35, s36
    s_and_b32 s39, s39, 3
    s_lshl_b32 s39, s39, 1
    """)
    C, S, ROT, W = 37, 38, 39, 32
    vXo0, vXo1, vBo0, vBo1 = 4, 5, 6, 7
    a("""
    v_lshrrev_b32 v8, 3, v1                   ; r8
    v_and_b32 v9, 7, v1                       ; sig
    v_lshrrev_b32 v10, 1, v8                  ; r8>>1
    v_xor_b32 v11, v9, v10
    v_xor_b32 v12, 4, v11
    v_lshlrev_b32 v13, 10, v8                 ; r8*1024
    v_lshl_add_u32 v4, v11, 4, v13
    v_lshl_add_u32 v5, v12, 4, v13
    v_add_u32 v5, 0x2000, v5                  ; +8 rows
    """)
    a(f"""
    s_lshl_b32 s40, s{C}, 17
    s_lshl_b32 s41, s{W}, 14
    s_add_u32 s40, s40, s41
    s_and_b32 s42, s{W}, 3
    s_lshl_b32 s42, s42, 14
    s_lshl_b32 s43, s{S}, 16
    s_add_u32 s42, s42, s43
    v_add_u32 v6, s42, v4
    v_add_u32 v7, s42, v5
    v_add_u32 v4, s40, v4
    v_add_u32 v5, s40, v5
    """)
    vP = 14
    a(f"""
    s_and_b32 s44, s{W}, 1                    ; ws
    s_lshr_b32 s45, s{W}, 1                   ; wr
    s_lshl_b32 s46, s{S}, 6
    s_lshl_b32 s47, s44, 5
    s_add_u32 s46, s46, s47
    v_and_b32 v{vP}, 31, v1
    v_add_u32 v{vP}, s46, v{vP}               ; p
    v_lshlrev_b32 v15, 1, v{vP}
    """)
    WS_, WR = 44, 45
    a("s_waitcnt lgkmcnt(0)")
    srd(a, 8, 0x200000)
    srd(a, 16, WS_SIZE)
    a(f"""
    s_cmp_lt_u32 s{W}, 4
    s_cselect_b32 s12, s28, s30
    s_cselect_b32 s13, s29, s31
    """)
    srd(a, 12, 0x80000)
    vLre, vLim, vLdt = 16, 17, 18
    vGX0, vGX1, vGW = 20, 24, 28
    a(f"""
    global_load_ushort v{vLre}, v15, s[20:21]
    global_load_ushort v{vLim}, v15, s[22:23]
    global_load_ushort v{vLdt}, v15, s[24:25]
    s_lshl_b32 s48, s{C}, 7
    s_lshl_b32 s49, s{S}, 4
    s_add_u32 s48, s48, s49
    s_lshl_b32 s49, s{W}, 1
    s_add_u32 s48, s48, s49
    s_lshl_b32 s49, s48, 10
    v_lshlrev_b32 v3, 4, v1
    global_load_dwordx4 v[{vGW}:{vGW+3}], v3, s[26:27]
    buffer_load_dwordx4 v[{vGX0}:{vGX0+3}], v3, s[8:11], s49 offen
    buffer_load_dwordx4 v[{vGX1}:{vGX1+3}], v3, s[8:11], s49 offen offset:1024
    """)
    NSMALL = 6
    a(f"s_lshl_b32 s50, s{W}, 11")
    def issue(i):
        slot = i & 3
        a(f"s_add_u32 s51, s{ROT}, {i}")
        a("s_and_b32 s51, s51, 7")
        a("s_lshl_b32 s51, s51, 7")
        base = slot*32768
        for (off, vo, sr_) in ((0, vXo0, 8), (1024, vXo1, 8), (16384, vBo0, 12), (16384+1024, vBo1, 12)):
            a(f"s_add_u32 m0, s50, {base+off}")
            a(f"buffer_load_dwordx4 v{vo}, s[{sr_}:{sr_+3}], s51 offen lds")
    for i in range(4): issue(i)
    stamp(a, 1)
    XCH = 131072
    a(f"""
    v_mov_b32 v32, 0
    v_mov_b32 v33, 0
    v_lshlrev_b32 v34, 3, v0
    v_add_u32 v34, {XCH}, v34
    v_cmp_gt_u32 vcc, 448, v0
    s_and_saveexec_b64 s[52:53], vcc
    s_cbranch_execz L_A_nozero
    ds_write_b64 v34, v[32:33]
    L_A_nozero:
    s_mov_b64 exec, s[52:53]
    """)
    vXA, vBA = 36, 40
    a(f"""
    v_and_b32 v8, 31, v1                      ; m
    v_lshrrev_b32 v9, 5, v1                   ; kg
    v_bfe_u32 v10, v8, 2, 1
    v_lshlrev_b32 v10, 4, v10                 ; 16*((m>>2)&1)
    v_lshrrev_b32 v11, 3, v8
    v_lshl_add_u32 v10, v11, 2, v10           ; +4*(m>>3)
    v_and_b32 v11, 3, v8
    v_add_u32 v10, v10, v11                   ; t(m)
    v_bfe_u32 v11, v10, 1, 3                  ; key
    v_xor_b32 v11, v11, v9
    v_lshlrev_b32 v11, 4, v11
    s_lshl_b32 s54, s{WR}, 12                 ; 32*wr*128
    v_lshl_add_u32 v11, v10, 7, v11
    v_add_u32 v{vXA}, s54, v11
    v_bfe_u32 v11, v8, 1, 3
    v_xor_b32 v11, v11, v9
    v_lshlrev_b32 v11, 4, v11
    v_lshl_add_u32 v11, v8, 7, v11
    s_lshl_b32 s54, s{WS_}, 12
    s_add_u32 s54, s54, 16384
    v_add_u32 v{vBA}, s54, v11
    """)
    for st in range(1, 4):
        a(f"v_xor_b32 v{vXA+st}, {32*st}, v{vXA}")
        a(f"v_xor_b32 v{vBA+st}, {32*st}, v{vBA}")
    ACR, ACI = 64, 80
    for r in range(32): a(f"v_mov_b32 v{ACR+r}, 0")
    a(f"s_waitcnt vmcnt({3+16})")
    vEr, vPh, vLr, vLi, vCr, vCi, vL16r, vL16i = 44, 45, 46, 47, 48, 49, 50, 51
    T0, T1, T2, T3 = 52, 53, 54, 55
    a(f"""
    v_lshlrev_b32 v{vLre}, 16, v{vLre}
    v_lshlrev_b32 v{vLim}, 16, v{vLim}
    v_lshlrev_b32 v{vLdt}, 16, v{vLdt}
    v_mul_f32 v{T0}, {LOG2E:#x}, v{vLdt}
    v_exp_f32 v{T0}, v{T0}
    """)
    rbf(a, T0, T0)
    a(f"""
    v_mul_f32 v{vEr}, v{T0}, v{vLre}
    v_mul_f32 v{vPh}, v{T0}, v{vLim}
    v_mul_f32 v{vEr}, {LOG2E:#x}, v{vEr}
    v_mul_f32 v{vPh}, {INV2PI:#x}, v{vPh}
    """)
    cexp(a, vLr, vLi, vEr, vPh, '1.0', T0, T1)
    a(f"""
    v_add_f32 v{T0}, -1.0, v{vLr}
    v_mul_f32 v{T1}, v{vLre}, v{vLre}
    v_fma_f32 v{T1}, v{vLim}, v{vLim}, v{T1}
    v_rcp_f32 v{T1}, v{T1}
    v_mul_f32 v{T2}, v{T0}, v{vLre}
    v_fma_f32 v{T2}, v{vLi}, v{vLim}, v{T2}
    v_mul_f32 v{T3}, v{T0}, v{vLim}
    v_fma_f32 v{T3}, v{vLi}, v{vLre}, -v{T3}
    v_mul_f32 v{vCr}, v{T2}, v{T1}
    v_mul_f32 v{vCi}, v{T3}, v{T1}
    """)
    csq(a, vL16r, vL16i, vLr, vLi, T0)
    for _ in range(3): csq(a, vL16r, vL16i, vL16r, vL16i, T0)
    a(f"""
    s_cmp_eq_u32 s{C}, 0
    s_cbranch_scc0 L_A_nolam
    s_cmp_eq_u32 s{WR}, 0
    s_cbranch_scc0 L_A_nolam
    v_lshlrev_b32 v{T0}, 4, v{vP}
    v_add_u32 v{T0}, {WS_LAM:#x}, v{T0}
    s_mov_b64 s[52:53], exec
    s_mov_b32 exec_hi, 0
    buffer_store_dwordx4 v[{vEr}:{vEr+3}], v{T0}, s[16:19], 0 offen
    s_mov_b64 exec, s[52:53]
    L_A_nolam:
    """)
    a("s_waitcnt vmcnt(16)")
    def gate_row(X, dst):
        first = True
        for k in range(4):
            a(f"v_lshlrev_b32 v{T0}, 16, v{X+k}")
            a(f"v_lshlrev_b32 v{T1}, 16, v{vGW+k}")
            a(f"v_and_b32 v{T2}, 0xffff0000, v{X+k}")
            a(f"v_and_b32 v{T3}, 0xffff0000, v{vGW+k}")
            if first:
                a(f"v_mul_f32 v{dst}, v{T0}, v{T1}"); first = False
            else:
                a(f"v_fmac_f32 v{dst}, v{T0}, v{T1}")
            a(f"v_fmac_f32 v{dst}, v{T2}, v{T3}")
        for n in (8, 4, 2, 1):
            a(f"v_mov_b32_dpp v{T0}, v{dst} row_ror:{n} row_mask:0xf bank_mask:0xf")
            a(f"v_add_f32 v{dst}, v{dst}, v{T0}")
    gate_row(vGX0, 56)
    gate_row(vGX1, 57)
    a(f"""
    v_readlane_b32 s56, v56, 0
    v_readlane_b32 s57, v56, 16
    v_readlane_b32 s58, v56, 32
    v_readlane_b32 s59, v56, 48
    v_readlane_b32 s60, v57, 0
    v_readlane_b32 s61, v57, 16
    v_readlane_b32 s62, v57, 32
    v_readlane_b32 s63, v57, 48
    v_mov_b32 v56, s56
    v_mov_b32 v57, s60
    v_add_f32 v56, s57, v56
    v_add_f32 v57, s61, v57
    v_add_f32 v56, s58, v56
    v_add_f32 v57, s62, v57
    v_add_f32 v56, s59, v56
    v_add_f32 v57, s63, v57
    v_cmp_eq_u32 vcc, 1, v1
    v_cndmask_b32 v56, v56, v57, vcc
    """)
    rbf(a, 56, 56)
    a(f"""
    v_mul_f32 v56, {LOG2E:#x}, v56
    v_exp_f32 v56, -v56
    v_add_f32 v56, 1.0, v56
    v_rcp_f32 v56, v56
    """)
    rbf(a, 56, 56)
    a(f"""
    v_add_u32 v57, s48, v1
    v_lshlrev_b32 v57, 2, v57
    v_add_u32 v57, {WS_G:#x}, v57
    s_mov_b64 s[52:53], exec
    s_mov_b64 exec, 3
    buffer_store_dword v56, v57, s[16:19], 0 offen
    s_mov_b64 exec, s[52:53]
    """)
    stamp(a, 2)
    FA = [96, 100]; FBR = [104, 108]; FBI = [112, 116]
    def reads(i, st, buf):
        slot = i & 3
        off = (slot & 1)*32768
        a(f"ds_read_b128 v[{FA[buf]}:{FA[buf]+3}], v{vXA+st} offset:{off}")
        a(f"ds_read_b128 v[{FBR[buf]}:{FBR[buf]+3}], v{vBA+st} offset:{off}")
        a(f"ds_read_b128 v[{FBI[buf]}:{FBI[buf]+3}], v{vBA+st} offset:{off+8192}")
    waits = {0: 12, 1: 8, 2: 8, 3: 8, 4: 8, 5: 8, 6: 4, 7: 0}
    for i in range(8):
        a(f"s_waitcnt vmcnt({waits[i]})")
        a("s_barrier")
        if i == 0: stamp(a, 3)
        if i == 4: stamp(a, 4)
        if i in (2, 4, 6):
            for r in range(4):
                a(f"v_xor_b32 v{vXA+r}, 0x10000, v{vXA+r}")
                a(f"v_xor_b32 v{vBA+r}, 0x10000, v{vBA+r}")
        if 1 <= i <= 4: issue(i+3)
        reads(i, 0, 0)
        for st in range(4):
            b = st & 1
            if st < 3:
                reads(i, st+1, b ^ 1)
                a("s_waitcnt lgkmcnt(3)")
            else:
                a("s_waitcnt lgkmcnt(0)")
            a(f"v_mfma_f32_32x32x16_bf16 v[{ACR}:{ACR+15}], v[{FA[b]}:{FA[b]+3}], v[{FBR[b]}:{FBR[b]+3}], v[{ACR}:{ACR+15}]")
            a(f"v_mfma_f32_32x32x16_bf16 v[{ACI}:{ACI+15}], v[{FA[b]}:{FA[b]+3}], v[{FBI[b]}:{FBI[b]+3}], v[{ACI}:{ACI+15}]")
    stamp(a, 5)
    for t in range(16):
        r, i_ = ACR+t, ACI+t
        a(f"v_mul_f32 v{T0}, v{vCi}, v{i_}")
        a(f"v_mul_f32 v{T1}, v{vCi}, v{r}")
        a(f"v_fma_f32 v{r}, v{vCr}, v{r}, -v{T0}")
        a(f"v_fma_f32 v{i_}, v{vCr}, v{i_}, v{T1}")
    eR, eI = 56, 57
    a(f"v_mov_b32 v{eR}, v{ACR}")
    a(f"v_mov_b32 v{eI}, v{ACI}")
    for t in range(1, 16):
        a(f"v_fma_f32 v{T0}, -v{vLi}, v{eI}, v{ACR+t}")
        a(f"v_fma_f32 v{T1}, v{vLi}, v{eR}, v{ACI+t}")
        a(f"v_fma_f32 v{eR}, v{vLr}, v{eR}, v{T0}")
        a(f"v_fma_f32 v{eI}, v{vLr}, v{eI}, v{T1}")
    a(f"""
    v_lshrrev_b32 v8, 5, v1                   ; hi
    s_lshl_b32 s54, s{WR}, 1
    v_add_u32 v8, s54, v8                     ; seg
    v_and_b32 v9, 31, v1
    s_lshl_b32 s54, s{WS_}, 5
    v_add_u32 v9, s54, v9
    v_lshlrev_b32 v9, 3, v9
    v_lshl_add_u32 v9, v8, 9, v9
    v_add_u32 v9, {XCH}, v9
    ds_write_b64 v9, v[{eR}:{eI}] offset:{7*512}
    s_waitcnt lgkmcnt(0)
    s_barrier
    """)
    EB = 96
    for i in range(7):
        a(f"ds_read_b64 v[{EB+2*i}:{EB+2*i+1}], v9 offset:{i*512}")
    a("s_waitcnt lgkmcnt(0)")
    cR, cI = EB, EB+1
    for i in range(1, 7):
        a(f"v_fma_f32 v{T0}, -v{vL16i}, v{cI}, v{EB+2*i}")
        a(f"v_fma_f32 v{T1}, v{vL16i}, v{cR}, v{EB+2*i+1}")
        a(f"v_fma_f32 v{cR}, v{vL16r}, v{cR}, v{T0}")
        a(f"v_fma_f32 v{cI}, v{vL16r}, v{cI}, v{T1}")
    a("; ---- pass 2")
    pr, pi = cR, cI
    for t in range(16):
        a(f"v_fma_f32 v{T0}, -v{vLi}, v{pi}, v{ACR+t}")
        a(f"v_fma_f32 v{T1}, v{vLi}, v{pr}, v{ACI+t}")
        a(f"v_fma_f32 v{ACR+t}, v{vLr}, v{pr}, v{T0}")
        a(f"v_fma_f32 v{ACI+t}, v{vLr}, v{pi}, v{T1}")
        pr, pi = ACR+t, ACI+t
    a(f"""
    s_cmp_eq_u32 s{WR}, 3
    s_cbranch_scc0 L_A_noE
    v_mov_b32 v{T0}, v{ACR+15}
    v_mov_b32 v{T1}, v{ACI+15}
    s_lshl_b32 s54, s{C}, 12
    s_add_u32 s54, s54, {WS_E:#x}
    v_lshlrev_b32 v{T2}, 3, v{vP}
    s_mov_b64 s[52:53], exec
    s_mov_b32 exec_lo, 0
    buffer_store_dwordx2 v[{T0}:{T1}], v{T2}, s[16:19], s54 offen
    s_mov_b64 exec, s[52:53]
    L_A_noE:
    """)
    stamp(a, 6)
    PK = 96
    for j in range(8):
        a(f"v_cvt_pk_bf16_f32 v{PK+j}, v{ACR+2*j}, v{ACR+2*j+1}")
        a(f"v_cvt_pk_bf16_f32 v{PK+8+j}, -v{ACI+2*j}, -v{ACI+2*j+1}")
    a(f"""
    v_lshrrev_b32 v8, 5, v1
    v_lshlrev_b32 v8, 5, v8
    v_lshl_add_u32 v8, v{vP}, 12, v8          ; p*4096
    s_lshl_b32 s54, s{C}, 8                   ; 128c*2
    s_lshl_b32 s55, s{WR}, 6                  ; 32wr*2
    s_add_u32 s54, s54, s55
    s_add_u32 s55, s54, 0x200000
    buffer_store_dwordx4 v[{PK}:{PK+3}], v8, s[16:19], s54 offen
    buffer_store_dwordx4 v[{PK+4}:{PK+7}], v8, s[16:19], s54 offen offset:16
    buffer_store_dwordx4 v[{PK+8}:{PK+11}], v8, s[16:19], s55 offen
    buffer_store_dwordx4 v[{PK+12}:{PK+15}], v8, s[16:19], s55 offen offset:16
    """)
    stamp_flush(a, 0, 7)
    a("s_endpgm")
```

```python
from common import *

CH_TAB = 72*512
F_ROW0 = 56
KC_BASE = 64
KC_COPY = 4160
KC_CH = 4*KC_COPY
UT_BASE = KC_BASE + 4*KC_CH
UT_CH = 4608
RED_BASE = UT_BASE + 4*UT_CH

def g_row_index(a_, c):
    if a_ < 2:
        rg = 2*a_ + (c >> 2); e = c & 3
        return 0*16 + 4*rg + e
    if a_ >= 8:
        rg = (a_-8) >> 1; e = 2*((a_-8) & 1) + (1 if c == 8 else 0)
        return 1*16 + 4*rg + e
    if a_ >= 4:
        rg = a_-4; e = {0: 0, 4: 1, 8: 2}[c]
        return 2*16 + 4*rg + e
    rg = a_-2
    if c == 8: return 2*16 + 4*rg + 3
    return 3*16 + 4*rg + c//2

def gen_B(a):
    stamp(a, 0)
    a("""
    s_load_dwordx2 s[8:9], s[0:1], 0          ; x
    s_load_dwordx4 s[20:23], s[0:1], 80
    s_load_dwordx4 s[24:27], s[0:1], 96
    s_load_dwordx4 s[28:31], s[0:1], 112
    s_load_dwordx2 s[16:17], s[0:1], 152      ; ws
    v_and_b32 v1, 63, v0
    v_lshrrev_b32 v2, 6, v0
    s_and_b32 s33, s2, 7                      ; xcd j
    v_readfirstlane_b32 s32, v2               ; wave
    s_lshr_b32 s34, s2, 3                     ; i (0..15)
    s_lshl_b32 s35, s33, 6
    s_lshl_b32 s36, s34, 2
    s_add_u32 s35, s35, s36                   ; d0
    """)
    W, I, D0 = 32, 34, 35
    a(f"""
    s_lshr_b32 s37, s{W}, 1                   ; ch
    s_and_b32 s38, s{W}, 1
    s_add_u32 s39, s{D0}, s37                 ; d = d0 + ch
    v_and_b32 v3, 127, v0                     ; mode n
    s_lshl_b32 s40, s39, 8                    ; d*256 bytes
    v_lshl_add_u32 v4, v3, 1, s40
    s_lshl_b32 s41, s39, 1
    v_mov_b32 v5, s41                         ; d*2
    s_waitcnt lgkmcnt(0)
    """)
    CH, PAR, D = 37, 38, 39
    srd(a, 8, 0x200000)
    srd(a, 16, WS_SIZE)
    vLA, vAI, vCR, vCI, vLD, vDS = 8, 9, 10, 11, 12, 13
    a(f"""
    global_load_ushort v{vLA}, v4, s[20:21]
    global_load_ushort v{vAI}, v4, s[22:23]
    global_load_ushort v{vLD}, v5, s[28:29]
    global_load_ushort v{vCR}, v4, s[24:25]
    global_load_ushort v{vCI}, v4, s[26:27]
    global_load_ushort v{vDS}, v5, s[30:31]
    """)
    a(f"""
    s_lshl_b32 s42, s{I}, 7
    s_lshl_b32 s43, s{W}, 4
    s_add_u32 s42, s42, s43
    v_and_b32 v6, 15, v1
    v_add_u32 v6, s42, v6
    v_lshlrev_b32 v6, 10, v6
    s_lshl_b32 s44, s{D0}, 1                  ; d0*2 bytes
    buffer_load_dword v14, v6, s[8:11], s44 offen
    """)
    U = 16
    a("v_lshlrev_b32 v7, 12, v0")
    for j in range(4):
        a(f"buffer_load_dwordx2 v[{U+2*j}:{U+2*j+1}], v7, s[8:11], s44 offen offset:{j*1024}")
    WA = 24
    a(f"""
    s_mul_i32 s45, s{CH}, {CH_TAB}
    v_lshlrev_b32 v3, 2, v3
    """)
    for k in range(8):
        a(f"v_xor_b32 v{WA+k}, {k<<5}, v3")
        a(f"v_add_u32 v{WA+k}, s45, v{WA+k}")
    stamp(a, 1)
    a("s_waitcnt vmcnt(5)")
    ER, PH, CRr, CIi = 32, 33, 34, 35
    T0, T1, T2 = 36, 37, 38
    a(f"""
    v_lshlrev_b32 v{vLA}, 16, v{vLA}
    v_lshlrev_b32 v{vAI}, 16, v{vAI}
    v_lshlrev_b32 v{vLD}, 16, v{vLD}
    v_lshlrev_b32 v{vCR}, 16, v{vCR}
    v_lshlrev_b32 v{vCI}, 16, v{vCI}
    v_lshlrev_b32 v{vDS}, 16, v{vDS}
    v_mul_f32 v{vLA}, {LOG2E:#x}, v{vLA}
    v_mul_f32 v{vLD}, {LOG2E:#x}, v{vLD}
    v_exp_f32 v{vLA}, v{vLA}
    v_exp_f32 v{vLD}, v{vLD}
    """)
    rbf(a, vLA, vLA)
    rbf(a, vLD, vLD)
    a(f"""
    v_mul_f32 v{ER}, v{vLA}, v{vLD}
    v_mul_f32 v{PH}, v{vAI}, v{vLD}
    v_mul_f32 v{ER}, {LOG2E ^ 0x80000000:#x}, v{ER}
    v_mul_f32 v{PH}, {INV2PI:#x}, v{PH}
    v_add_f32 v{vLD}, v{vLD}, v{vLD}
    v_mul_f32 v{CRr}, v{vCR}, v{vLD}
    v_mul_f32 v{CIi}, v{vCI}, v{vLD}
    """)
    stamp(a, 2)
    W1r, W1i, W2r, W2i, W4r, W4i, W8r, W8i, WKr, WKi = 40, 41, 42, 43, 44, 45, 46, 47, 48, 49
    cexp(a, W1r, W1i, ER, PH, '1.0', T0, T1)
    cexp(a, W8r, W8i, ER, PH, fhex(8.0), T0, T1)
    cexp(a, WKr, WKi, ER, PH, fhex(128.0), T0, T1)
    csq(a, W2r, W2i, W1r, W1i, T0)
    csq(a, W4r, W4i, W2r, W2i, T0)
    PK = [50, 51, 52, 53]; pkc = [0]
    def put(row, r, i, neg=False):
        p = PK[pkc[0] % 4]; pkc[0] += 1
        a(f"v_cvt_pk_bf16_f32 v{p}, v{r}, {'-' if neg else ''}v{i}")
        a(f"ds_write_b32 v{WA + (row & 7)}, v{p} offset:{row*512}")
    Fr, Fi = 54, 55
    a(f"v_mov_b32 v{Fr}, 1.0"); a(f"v_mov_b32 v{Fi}, 0")
    put(F_ROW0+0, Fr, Fi, True)
    put(F_ROW0+1, W8r, W8i, True)
    Rr, Ri = CRr, CIi
    Sr, Si = 56, 57
    fstate = [1, W8r, W8i]
    def fstep():
        f, pr, pi = fstate
        if f >= 15: return
        cmul(a, Fr, Fi, pr, pi, W8r, W8i, T0, T1) if (pr, pi) != (Fr, Fi) else cmul(a, Fr, Fi, Fr, Fi, W8r, W8i, T0, T1)
        fstate[0] = f+1; fstate[1] = Fr; fstate[2] = Fi
        put(F_ROW0+f+1, Fr, Fi, True)
    for a_ in range(16):
        if a_ > 0:
            cmul(a, Rr, Ri, Rr, Ri, WKr, WKi, T0, T1)
        put(g_row_index(a_, 0), Rr, Ri)
        if a_ < 2:   cs, (wr, wi) = list(range(1, 8)), (W1r, W1i)
        elif a_ < 4: cs, (wr, wi) = [2, 4, 6, 8], (W2r, W2i)
        elif a_ < 8: cs, (wr, wi) = [4, 8], (W4r, W4i)
        else:        cs, (wr, wi) = [8], (W8r, W8i)
        pr, pi = Rr, Ri
        for c in cs:
            cmul(a, Sr, Si, pr, pi, wr, wi, T2, T1)
            pr, pi = Sr, Si
            put(g_row_index(a_, c), Sr, Si)
        fstep()
    while fstate[0] < 15: fstep()
    a("s_waitcnt lgkmcnt(0)")
    a("s_barrier")
    stamp(a, 3)
    RA = 24
    a(f"""
    v_and_b32 v2, 15, v1                      ; row16
    v_lshrrev_b32 v3, 4, v1                   ; kg
    v_and_b32 v4, 7, v2
    v_lshlrev_b32 v4, 1, v4
    v_xor_b32 v4, v4, v3
    v_lshlrev_b32 v4, 4, v4
    v_lshl_add_u32 v4, v2, 9, v4
    v_add_u32 v4, s45, v4
    """)
    for s_ in range(8):
        a(f"v_xor_b32 v{RA+s_}, {s_*64}, v4")
    a(f"s_lshl_b32 s46, s{PAR}, 14")
    GA = 40
    for s_ in range(8):
        a(f"v_add_u32 v{GA+s_}, s46, v{RA+s_}")
    D0_, D1_ = 56, 60
    for r in range(8): a(f"v_mov_b32 v{D0_+r}, 0")
    FF, G0, G1 = [64, 76], [68, 80], [72, 84]
    def rd(s_, b):
        a(f"ds_read_b128 v[{FF[b]}:{FF[b]+3}], v{RA+s_} offset:{F_ROW0*512}")
        a(f"ds_read_b128 v[{G0[b]}:{G0[b]+3}], v{GA+s_}")
        a(f"ds_read_b128 v[{G1[b]}:{G1[b]+3}], v{GA+s_} offset:8192")
    rd(0, 0)
    for s_ in range(8):
        b = s_ & 1
        if s_ < 7:
            rd(s_+1, b ^ 1); a("s_waitcnt lgkmcnt(3)")
        else: a("s_waitcnt lgkmcnt(0)")
        a(f"v_mfma_f32_16x16x32_bf16 v[{D0_}:{D0_+3}], v[{G0[b]}:{G0[b]+3}], v[{FF[b]}:{FF[b]+3}], v[{D0_}:{D0_+3}]")
        a(f"v_mfma_f32_16x16x32_bf16 v[{D1_}:{D1_+3}], v[{G1[b]}:{G1[b]+3}], v[{FF[b]}:{FF[b]+3}], v[{D1_}:{D1_+3}]")
    a("s_barrier")
    stamp(a, 4)
    a(f"""
    s_mul_i32 s47, s{CH}, {KC_CH}
    s_add_u32 s47, s47, {KC_BASE}
    s_cmp_eq_u32 s{PAR}, 0
    s_cbranch_scc0 L_B_half1
    """)
    P = 64
    a(f"""
    v_cvt_pk_bf16_f32 v{P}, v{D0_+3}, v{D0_+2}
    v_cvt_pk_bf16_f32 v{P+1}, v{D0_+1}, v{D0_}
    v_lshrrev_b32 v4, 1, v3
    v_lshlrev_b32 v4, 8, v4                   ; 256*(rg>>1)
    v_lshl_add_u32 v4, v2, 4, v4              ; +16 f
    v_and_b32 v5, 1, v3
    v_lshl_add_u32 v4, v5, 3, v4              ; +8*(rg&1)
    v_sub_u32 v4, {2044*2}, v4
    v_add_u32 v4, s47, v4
    ds_write_b64 v4, v[{P}:{P+1}]
    v_and_b32 v5, 1, v2
    v_cmp_eq_u32 vcc, 1, v5
    v_lshlrev_b32 v4, 9, v3
    v_lshl_add_u32 v4, v2, 4, v4
    v_sub_u32 v4, {4080 - 16*16*8}, v4
    v_add_u32 v4, s47, v4
    v_cndmask_b32 v6, v{D1_}, v{D1_+1}, vcc
    v_cndmask_b32 v7, v{D1_+2}, v{D1_+3}, vcc
    v_cvt_pk_bf16_f32 v{P+4}, v{D1_+1}, v{D1_+1}
    v_cvt_pk_bf16_f32 v{P+5}, v{D1_+1}, v6
    v_cvt_pk_bf16_f32 v{P+6}, v{D1_}, v{D1_}
    v_mov_b32 v{P+7}, v{P+6}
    v_add_u32 v5, -256, v4
    ds_write_b128 v4, v[{P+4}:{P+7}]
    v_cvt_pk_bf16_f32 v{P+8}, v{D1_+3}, v{D1_+3}
    v_cvt_pk_bf16_f32 v{P+9}, v{D1_+3}, v7
    v_cvt_pk_bf16_f32 v{P+10}, v{D1_+2}, v{D1_+2}
    v_mov_b32 v{P+11}, v{P+10}
    ds_write_b128 v5, v[{P+8}:{P+11}]
    s_branch L_B_exp1done
    L_B_half1:
    v_lshlrev_b32 v4, 8, v3
    v_lshl_add_u32 v4, v2, 4, v4
    v_sub_u32 v5, {4080 - 16*16*4}, v4
    v_add_u32 v5, s47, v5
    v_cvt_pk_bf16_f32 v{P}, v{D0_+2}, v{D0_+2}
    v_cvt_pk_bf16_f32 v{P+1}, v{D0_+1}, v{D0_+1}
    v_cvt_pk_bf16_f32 v{P+2}, v{D0_+1}, v{D0_}
    v_cvt_pk_bf16_f32 v{P+3}, v{D0_}, v{D0_}
    ds_write_b128 v5, v[{P}:{P+3}]
    v_sub_u32 v5, {4080 - 16*16*2}, v4
    v_add_u32 v5, s47, v5
    v_cvt_pk_bf16_f32 v{P+4}, v{D0_+3}, v{D1_+3}
    v_cvt_pk_bf16_f32 v{P+5}, v{D1_+2}, v{D1_+2}
    v_cvt_pk_bf16_f32 v{P+6}, v{D1_+2}, v{D1_+1}
    v_cvt_pk_bf16_f32 v{P+7}, v{D1_}, v{D1_}
    s_mov_b32 exec_hi, 0
    ds_write_b128 v5, v[{P+4}:{P+7}]
    v_mov_b32 v{P+8}, 0
    v_mov_b32 v{P+9}, 0
    v_mov_b32 v{P+10}, 0
    v_mov_b32 v{P+11}, 0
    v_lshlrev_b32 v5, 4, v1
    v_add_u32 v5, s47, v5
    s_mov_b64 exec, 3
    ds_write_b128 v5, v[{P+8}:{P+11}] offset:4096
    s_mov_b64 exec, -1
    L_B_exp1done:
    """)
    a(f"""
    v_mov_b32 v{P+12}, 0
    v_mov_b32 v{P+13}, 0
    v_mov_b32 v{P+14}, 0
    v_mov_b32 v{P+15}, 0
    v_lshrrev_b32 v4, 5, v0                   ; ch = t>>5 (t<128)
    v_mul_u32_u24 v4, {UT_CH}, v4
    v_and_b32 v5, 31, v0
    v_lshl_add_u32 v4, v5, 4, v4
    v_add_u32 v4, {UT_BASE}, v4
    v_cmp_gt_u32 vcc, 128, v0
    s_and_saveexec_b64 s[52:53], vcc
    s_cbranch_execz L_B_nouz
    ds_write_b128 v4, v[{P+12}:{P+15}]
    L_B_nouz:
    s_mov_b64 exec, s[52:53]
    s_waitcnt vmcnt(0)
    s_mov_b32 s48, 0x05040100
    s_mov_b32 s49, 0x07060302
    v_lshlrev_b32 v4, 3, v0
    v_add_u32 v4, {UT_BASE + 512}, v4
    """)
    for ch in range(4):
        dw = ch >> 1; sel = 48 + (ch & 1)
        q = P + 16 + 2*(ch & 1)
        a(f"v_perm_b32 v{q}, v{U+2+dw}, v{U+dw}, s{sel}")
        a(f"v_perm_b32 v{q+1}, v{U+6+dw}, v{U+4+dw}, s{sel}")
        a(f"ds_write_b64 v4, v[{q}:{q+1}] offset:{ch*UT_CH}")
    a("s_waitcnt lgkmcnt(0)")
    a("s_barrier")
    stamp(a, 5)
    a(f"""
    v_and_b32 v4, 127, v0
    v_lshlrev_b32 v4, 4, v4
    v_add_u32 v4, s47, v4
    """)
    def stage2(off):
        Dm = 64
        a(f"ds_read_b128 v[68:71], v4 offset:{off}")
        a(f"v_add_u32 v5, {off - 8}, v4")
        a(f"ds_read_b64 v[66:67], v5")
        a("s_waitcnt lgkmcnt(0)")
        for j in range(-1, 4):
            a(f"v_alignbit_b32 v{73+j}, v{68+j}, v{68+j-1}, 16")
        a("v_mov_b32 v80, v73"); a("v_mov_b32 v81, v74"); a("v_mov_b32 v82, v75"); a("v_mov_b32 v83, v76")
        a(f"ds_write_b128 v4, v[80:83] offset:{off + KC_COPY}")
        a(f"ds_write_b128 v4, v[72:75] offset:{off + 3*KC_COPY}")
        a("v_mov_b32 v84, v67"); a("v_mov_b32 v85, v68"); a("v_mov_b32 v86, v69"); a("v_mov_b32 v87, v70")
        a(f"ds_write_b128 v4, v[84:87] offset:{off + 2*KC_COPY}")
    stage2(0)
    stage2(2048)
    a(f"""
    v_and_b32 v5, 127, v0
    v_cmp_gt_u32 vcc, 2, v5
    s_and_saveexec_b64 s[52:53], vcc
    s_cbranch_execz L_B_nost3
    """)
    stage2(4096)
    a("""
    L_B_nost3:
    s_mov_b64 exec, s[52:53]
    s_waitcnt lgkmcnt(0)
    s_barrier
    """)
    stamp(a, 6)
    UF = 96
    ACC = 224
    AF = [64, 68, 72, 76]
    a(f"""
    s_mul_i32 s50, s{CH}, {UT_CH}
    s_lshl_b32 s51, s{PAR}, 6
    s_sub_u32 s50, s50, s51
    s_add_u32 s50, s50, {UT_BASE + 512 - 64*6 - 32}
    v_lshlrev_b32 v4, 5, v2
    v_lshl_add_u32 v4, v3, 4, v4
    v_add_u32 v4, s50, v4
    """)
    for u in range(32):
        a(f"ds_read_b128 v[{UF+4*u}:{UF+4*u+3}], v4 offset:{128*u}")
    a(f"""
    v_add_u32 v5, 1, v2
    v_and_b32 v6, 3, v5
    v_mul_u32_u24 v6, {KC_COPY}, v6
    v_lshrrev_b32 v5, 2, v5
    v_lshlrev_b32 v5, 3, v5
    v_sub_u32 v6, v6, v5
    v_lshl_add_u32 v6, v3, 4, v6
    s_sub_u32 s50, s47, s51
    s_add_u32 s50, s50, {2*2032 - 128*31}
    v_add_u32 v6, s50, v6
    """)
    for r in range(32): a(f"v_mov_b32 v{ACC+r}, 0")
    def ard(tp):
        b = AF[tp & 3]
        off = 128*(31-tp)
        a(f"ds_read_b64 v[{b}:{b+1}], v6 offset:{off}")
        a(f"ds_read_b64 v[{b+2}:{b+3}], v6 offset:{off+8}")
    a("s_waitcnt lgkmcnt(0)")
    ard(0); ard(1); ard(2)
    for tp in range(32):
        if tp + 3 < 32:
            ard(tp+3); a("s_waitcnt lgkmcnt(6)")
        else:
            a(f"s_waitcnt lgkmcnt({2*(31-tp)})")
        b = AF[tp & 3]
        for tau in range(tp >> 2, 8):
            u = 4*tau - tp + 3
            a(f"v_mfma_f32_16x16x32_bf16 v[{ACC+4*tau}:{ACC+4*tau+3}], v[{b}:{b+3}], v[{UF+4*u}:{UF+4*u+3}], v[{ACC+4*tau}:{ACC+4*tau+3}]")
    stamp(a, 7)
    a(f"""
    s_cmp_eq_u32 s{PAR}, 1
    s_cbranch_scc0 L_B_noswap
    """)
    for r in range(16): a(f"v_swap_b32 v{ACC+r}, v{ACC+16+r}")
    a(f"""
    L_B_noswap:
    s_lshl_b32 s50, s{W}, 12
    s_add_u32 s50, s50, {RED_BASE}
    v_lshlrev_b32 v4, 4, v1
    v_add_u32 v5, s50, v4
    s_xor_b32 s50, s{W}, 1
    s_lshl_b32 s50, s50, 12
    s_add_u32 s50, s50, {RED_BASE}
    v_add_u32 v4, s50, v4
    """)
    for j in range(4):
        a(f"ds_write_b128 v5, v[{ACC+16+4*j}:{ACC+16+4*j+3}] offset:{1024*j}")
    a(f"""
    s_mul_i32 s50, s{CH}, {UT_CH}
    s_lshl_b32 s51, s{PAR}, 11                ; 4par*256*2
    s_add_u32 s50, s50, s51
    s_add_u32 s50, s50, {UT_BASE + 512}
    v_lshlrev_b32 v6, 5, v2
    v_lshl_add_u32 v6, v3, 3, v6              ; (16 i + 4 rg)*2
    v_add_u32 v7, s50, v6
    """)
    UE = 64
    for j in range(4):
        a(f"ds_read_b64 v[{UE+2*j}:{UE+2*j+1}], v7 offset:{512*j}")
    a("s_waitcnt lgkmcnt(0)")
    a("s_barrier")
    PR = 96
    for j in range(4):
        a(f"ds_read_b128 v[{PR+4*j}:{PR+4*j+3}], v4 offset:{1024*j}")
    a(f"""
    s_lshl_b32 s50, s{D}, 12
    s_add_u32 s50, s50, s51
    s_add_u32 s50, s50, {WS_BT:#x}
    s_waitcnt lgkmcnt(0)
    """)
    for j in range(4):
        y = ACC + 4*j
        for e in range(4): a(f"v_add_f32 v{y+e}, v{y+e}, v{PR+4*j+e}")
        a(f"v_cvt_pk_bf16_f32 v72, v{y}, v{y+1}")
        a(f"v_cvt_pk_bf16_f32 v73, v{y+2}, v{y+3}")
        a(f"v_lshlrev_b32 v74, 16, v{UE+2*j}")
        a(f"v_and_b32 v75, 0xffff0000, v{UE+2*j}")
        a(f"v_lshlrev_b32 v76, 16, v{UE+2*j+1}")
        a(f"v_and_b32 v77, 0xffff0000, v{UE+2*j+1}")
        for e in range(4): a(f"v_mul_f32 v{74+e}, v{74+e}, v{vDS}")
        a("v_cvt_pk_bf16_f32 v78, v74, v75")
        a("v_cvt_pk_bf16_f32 v79, v76, v77")
        a("v_lshlrev_b32 v74, 16, v72"); a("v_and_b32 v75, 0xffff0000, v72")
        a("v_lshlrev_b32 v76, 16, v73"); a("v_and_b32 v77, 0xffff0000, v73")
        a("v_lshlrev_b32 v80, 16, v78"); a("v_and_b32 v81, 0xffff0000, v78")
        a("v_lshlrev_b32 v82, 16, v79"); a("v_and_b32 v83, 0xffff0000, v79")
        for e in range(4): a(f"v_add_f32 v{74+e}, v{74+e}, v{80+e}")
        a(f"v_cvt_pk_bf16_f32 v{84+2*j}, v74, v75")
        a(f"v_cvt_pk_bf16_f32 v{85+2*j}, v76, v77")
        a(f"buffer_store_dwordx2 v[{84+2*j}:{85+2*j}], v6, s[16:19], s50 offen offset:{512*j}")
    stamp(a, 8)
    stamp_flush(a, 0, 9)
    a("s_endpgm")
```

```python
from common import *

MISC = 114688
LAMZ = MISC
HH = MISC + 8192
STAGE = 131072
RED = 16384

def phase2():
    a = Asm()
    a("""
    s_cmp_ge_u32 s2, 256
    s_cbranch_scc1 L_P2_end
    """)
    stamp(a, 0)
    a("""
    s_load_dwordx2 s[8:9], s[0:1], 0          ; x
    s_load_dwordx4 s[28:31], s[0:1], 40
    s_load_dwordx2 s[16:17], s[0:1], 152      ; ws
    s_load_dwordx2 s[20:21], s[0:1], 136      ; out
    s_load_dwordx2 s[24:25], s[0:1], 64       ; A_Dskip
    v_and_b32 v1, 63, v0
    v_lshrrev_b32 v2, 6, v0
    s_and_b32 s33, s2, 7                      ; j
    v_readfirstlane_b32 s32, v2               ; w
    s_lshr_b32 s34, s2, 3                     ; idx
    s_lshr_b32 s35, s34, 3                    ; idx>>3
    s_and_b32 s36, s34, 7                     ; dtile
    s_lshl_b32 s37, s33, 2
    s_add_u32 s37, s37, s35                   ; rt
    s_lshr_b32 s38, s37, 1                    ; chunk c
    s_and_b32 s39, s37, 1                     ; half
    s_lshl_b32 s40, s35, 1
    s_add_u32 s40, s40, s36
    s_and_b32 s40, s40, 7                     ; rot
    s_lshl_b32 s41, s37, 6                    ; l0
    s_lshl_b32 s42, s36, 6                    ; d0
    """)
    W, C, HALF, ROT, L0, D0 = 32, 38, 39, 40, 41, 42
    WI, WJ, KH = 43, 44, 45
    a(f"""
    s_and_b32 s{WI}, s{W}, 1
    s_bfe_u32 s{WJ}, s{W}, 0x10001
    s_lshr_b32 s{KH}, s{W}, 2
    """)
    vH, vC0, vC1, vSW, vTR, vCB, vM, vTb, vTb2 = 4, 5, 6, 7, 8, 9, 13, 14, 15
    a(f"""
    v_lshrrev_b32 v2, 3, v0                   ; ps
    v_and_b32 v3, 7, v0                       ; c8
    v_lshlrev_b32 v{vH}, 12, v2
    v_lshl_add_u32 v{vH}, v3, 4, v{vH}
    v_bfe_u32 v26, v2, 1, 1
    v_lshlrev_b32 v26, 2, v26
    v_xor_b32 v26, v26, v3
    v_lshlrev_b32 v26, 4, v26
    v_lshl_add_u32 v{vSW}, v2, 7, v26
    v_add_u32 v{vSW}, {STAGE}, v{vSW}
    v_lshlrev_b32 v{vM}, 3, v3
    v_add_u32 v{vM}, 1, v{vM}
    v_cvt_f32_u32 v{vM}, v{vM}
    v_lshlrev_b32 v{vTb}, 4, v2
    v_add_u32 v{vTb}, {LAMZ}, v{vTb}
    v_lshlrev_b32 v{vTb2}, 3, v2
    v_add_u32 v{vTb2}, {HH}, v{vTb2}
    """)
    a(f"""
    v_lshrrev_b32 v26, 3, v1                  ; r8
    v_and_b32 v27, 7, v1
    v_lshrrev_b32 v28, 1, v26
    v_xor_b32 v27, v27, v28
    v_xor_b32 v28, 4, v27
    v_lshlrev_b32 v26, 10, v26
    v_lshl_add_u32 v{vC0}, v27, 4, v26
    v_lshl_add_u32 v{vC1}, v28, 4, v26
    v_add_u32 v{vC1}, 0x2000, v{vC1}
    s_and_b32 s46, s{W}, 3
    s_lshl_b32 s46, s46, 4
    s_add_u32 s46, s46, s{D0}
    s_lshl_b32 s46, s46, 10
    v_add_u32 v{vC0}, s46, v{vC0}
    v_add_u32 v{vC1}, s46, v{vC1}
    s_lshl_b32 s50, s{W}, 11                  ; w*2048
    """)
    EB = 96
    for r in range(30): a(f"v_mov_b32 v{EB+r}, 0")
    a("s_waitcnt lgkmcnt(0)")
    srd(a, 8, 0x200000)
    srd(a, 16, WS_SIZE)
    srd(a, 20, 0x400000)
    a(f"""
    s_cmp_lt_u32 s{W}, 4
    s_cselect_b32 s12, s28, s30
    s_cselect_b32 s13, s29, s31
    """)
    srd(a, 12, 0x80000)
    LZ = 16
    a(f"""
    v_lshlrev_b32 v26, 4, v0
    v_add_u32 v26, {WS_LAM:#x}, v26
    buffer_load_dwordx4 v[{LZ}:{LZ+3}], v26, s[16:19], 0 offen
    v_lshlrev_b32 v27, 3, v0
    s_lshl_b32 s47, s{C}, 12
    s_add_u32 s47, s47, {WS_E:#x}
    """)
    for i in range(15):
        a(f"s_cmp_gt_u32 s{C}, {i}")
        a("s_cbranch_scc0 L_P2_Edone")
        a("s_sub_u32 s47, s47, 4096")
        a(f"buffer_load_dwordx2 v[{EB+2*i}:{EB+2*i+1}], v27, s[16:19], s47 offen")
    a.label("L_P2_Edone")
    HB = 128
    a(f"s_lshl_b32 s48, s{L0}, 1")
    def kc(i, sreg):
        a(f"s_add_u32 s{sreg}, s{ROT}, {i}")
        a(f"s_and_b32 s{sreg}, s{sreg}, 7")
    def issue_h(i):
        kc(i, 51)
        a("s_lshl_b32 s52, s51, 18")
        a("s_add_u32 s52, s52, s48")
        a("s_add_u32 s53, s52, 0x200000")
        a(f"buffer_load_dwordx4 v[{HB+8*i}:{HB+8*i+3}], v{vH}, s[16:19], s52 offen")
        a(f"buffer_load_dwordx4 v[{HB+8*i+4}:{HB+8*i+7}], v{vH}, s[16:19], s53 offen")
    def issue_c(i):
        kc(i, 51)
        a("s_lshl_b32 s51, s51, 7")
        slot = i if i < 7 else 0
        a(f"s_add_u32 m0, s50, {slot*16384}")
        a(f"buffer_load_dwordx4 v{vC0}, s[12:15], s51 offen lds")
        a(f"s_add_u32 m0, s50, {slot*16384+1024}")
        a(f"buffer_load_dwordx4 v{vC1}, s[12:15], s51 offen lds")
    for i in range(7):
        issue_h(i); issue_c(i)
    issue_h(7)
    XE, BE, GE, DK = 64, 72, 76, 84
    vXo, vBo, vGo, vOo = 85, 86, 87, 88
    a(f"""
    v_lshrrev_b32 v26, 5, v1                  ; hi
    v_and_b32 v27, 31, v1                     ; n
    s_lshl_b32 s54, s{WI}, 5
    s_lshl_b32 s55, s{KH}, 3
    s_add_u32 s54, s54, s55
    v_lshl_add_u32 v26, v26, 4, s54
    s_lshl_b32 s55, s{WJ}, 5
    v_add_u32 v27, s55, v27
    v_lshlrev_b32 v28, 1, v27
    v_lshl_add_u32 v{vXo}, v26, 10, v28
    v_lshlrev_b32 v28, 1, v26
    v_lshl_add_u32 v{vBo}, v27, 12, v28
    v_lshlrev_b32 v{vGo}, 2, v26
    v_lshlrev_b32 v28, 2, v27
    v_lshl_add_u32 v{vOo}, v26, 11, v28
    v_add_u32 v28, s{D0}, v27
    v_lshlrev_b32 v28, 1, v28
    s_lshl_b32 s54, s{L0}, 10
    s_lshl_b32 s55, s{D0}, 1
    s_add_u32 s54, s54, s55
    """)
    for e in range(8):
        a(f"buffer_load_ushort v{XE+e}, v{vXo}, s[8:11], s54 offen")
        if e < 7: a("s_add_u32 s54, s54, 1024")
    a(f"""
    s_lshl_b32 s54, s{D0}, 12
    s_add_u32 s54, s54, s48
    s_add_u32 s54, s54, {WS_BT:#x}
    buffer_load_dwordx4 v[{BE}:{BE+3}], v{vBo}, s[16:19], s54 offen
    s_lshl_b32 s54, s{L0}, 2
    s_add_u32 s54, s54, {WS_G:#x}
    buffer_load_dwordx4 v[{GE}:{GE+3}], v{vGo}, s[16:19], s54 offen
    buffer_load_dwordx4 v[{GE+4}:{GE+7}], v{vGo}, s[16:19], s54 offen offset:16
    global_load_ushort v{DK}, v28, s[24:25]
    """)
    stamp(a, 1)
    a(f"""
    v_and_b32 v26, 15, v1
    v_lshrrev_b32 v27, 2, v26                 ; r
    v_and_b32 v26, 3, v1                      ; c'
    v_lshrrev_b32 v28, 4, v1                  ; G
    v_and_b32 v29, 1, v28
    v_lshl_add_u32 v26, v29, 2, v26           ; q = 4(G&1)+c'
    v_and_b32 v29, 1, v26
    v_lshlrev_b32 v29, 2, v29
    v_lshrrev_b32 v26, 1, v26
    v_add_u32 v26, v26, v29                   ; lambda
    v_lshlrev_b32 v26, 3, v26                 ; 8*lambda
    v_lshrrev_b32 v29, 1, v27                 ; r>>1
    v_xor_b32 v29, s{WI}, v29
    v_lshl_add_u32 v26, v29, 6, v26           ; + 64*(wi ^ (r>>1))
    v_lshrrev_b32 v28, 1, v28                 ; kg
    v_lshl_add_u32 v27, v28, 3, v27           ; 8kg + r
    v_lshl_add_u32 v26, v27, 7, v26
    s_lshl_b32 s54, s{KH}, 13                 ; 64*kh*128
    s_add_u32 s54, s54, {STAGE}
    v_add_u32 v{vTR}, s54, v26
    v_and_b32 v26, 31, v1                     ; n
    v_lshrrev_b32 v27, 5, v1                  ; kg
    v_bfe_u32 v28, v26, 1, 3
    v_xor_b32 v28, v28, v27
    v_lshlrev_b32 v28, 4, v28
    v_lshl_add_u32 v28, v26, 7, v28
    s_lshl_b32 s54, s{KH}, 13
    s_lshl_b32 s55, s{WJ}, 12
    s_add_u32 s54, s54, s55
    v_add_u32 v{vCB}, s54, v28
    """)
    for s_ in range(1, 4): a(f"v_xor_b32 v{vCB+s_}, {32*s_}, v{vCB}")
    ACC = 48
    for r in range(16): a(f"v_mov_b32 v{ACC+r}, 0")
    T0, T1, T2, T3 = 26, 27, 28, 29
    LTr, LTi, L64r, L64i, Hr, Hi = 20, 21, 22, 23, 24, 25
    a("s_waitcnt vmcnt(42)")
    stamp(a, 2)
    csq(a, LTr, LTi, LZ+2, LZ+3, T0)
    for _ in range(5): csq(a, LTr, LTi, LTr, LTi, T0)
    a(f"v_mov_b32 v{L64r}, v{LTr}"); a(f"v_mov_b32 v{L64i}, v{LTi}")
    csq(a, LTr, LTi, LTr, LTi, T0)
    a(f"v_mov_b32 v{Hr}, v{EB+28}"); a(f"v_mov_b32 v{Hi}, v{EB+29}")
    for i in range(13, -1, -1):
        a(f"v_fma_f32 v{T0}, -v{LTi}, v{Hi}, v{EB+2*i}")
        a(f"v_fma_f32 v{T1}, v{LTi}, v{Hr}, v{EB+2*i+1}")
        a(f"v_fma_f32 v{Hr}, v{LTr}, v{Hr}, v{T0}")
        a(f"v_fma_f32 v{Hi}, v{LTr}, v{Hi}, v{T1}")
    a(f"s_cmp_eq_u32 s{HALF}, 1")
    a("s_cbranch_scc0 L_P2_nohalf")
    cmul(a, Hr, Hi, Hr, Hi, L64r, L64i, T0, T1)
    a.label("L_P2_nohalf")
    a(f"""
    v_lshlrev_b32 v{T0}, 4, v0
    v_add_u32 v{T0}, {LAMZ}, v{T0}
    ds_write_b128 v{T0}, v[{LZ}:{LZ+3}]
    v_lshlrev_b32 v{T1}, 3, v0
    v_add_u32 v{T1}, {HH}, v{T1}
    ds_write_b64 v{T1}, v[{Hr}:{Hi}]
    s_waitcnt lgkmcnt(0)
    s_barrier
    """)
    TZ, TH = 30, 34
    gr, gi = 42, 43
    A0, A1, B0, B1 = 44, 45, 46, 47
    def tbl_read(k):
        kc(k, 51)
        a("s_lshl_b32 s52, s51, 10")
        a("s_lshl_b32 s53, s51, 9")
        a(f"v_add_u32 v{T2}, s52, v{vTb}")
        a(f"v_add_u32 v{T3}, s53, v{vTb2}")
        a(f"ds_read_b128 v[{TZ}:{TZ+3}], v{T2}")
        a(f"ds_read_b64 v[{TH}:{TH+1}], v{T3}")
    def g0():
        cexp(a, gr, gi, TZ, TZ+1, f"v{vM}", T0, T1)
        cmul(a, gr, gi, gr, gi, TH, TH+1, T0, T1)
    lr, li = TZ+2, TZ+3
    def gstep():
        a(f"v_mul_f32 v{T0}, v{li}, v{gi}")
        a(f"v_mul_f32 v{T1}, v{li}, v{gr}")
        a(f"v_fma_f32 v{gr}, v{lr}, v{gr}, -v{T0}")
        a(f"v_fma_f32 v{gi}, v{lr}, v{gi}, v{T1}")
    def corr_pair(k, q):
        R, I = HB+8*k+q, HB+8*k+4+q
        a(f"v_lshlrev_b32 v{A0}, 16, v{R}")
        a(f"v_lshlrev_b32 v{B0}, 16, v{I}")
        a(f"v_and_b32 v{A1}, 0xffff0000, v{R}")
        a(f"v_and_b32 v{B1}, 0xffff0000, v{I}")
        a(f"v_add_f32 v{A0}, v{A0}, v{gr}")
        a(f"v_sub_f32 v{B0}, v{B0}, v{gi}")
        gstep()
        a(f"v_add_f32 v{A1}, v{A1}, v{gr}")
        a(f"v_sub_f32 v{B1}, v{B1}, v{gi}")
        if q < 3: gstep()
        a(f"v_cvt_pk_bf16_f32 v{R}, v{A0}, v{A1}")
        a(f"v_cvt_pk_bf16_f32 v{I}, v{B0}, v{B1}")
    def stage_write(k):
        off = (k & 1)*16384
        a(f"ds_write_b128 v{vSW}, v[{HB+8*k}:{HB+8*k+3}] offset:{off}")
        a(f"ds_write_b128 v{vSW}, v[{HB+8*k+4}:{HB+8*k+7}] offset:{off+8192}")
    FA, FB = 96, 112
    def frag_reads(i):
        slot = i if i < 7 else 0
        coff = (slot & 3)*16384
        for s_ in range(4):
            o = (i & 1)*16384 + s_*2048
            a(f"ds_read_b64_tr_b16 v[{FA+4*s_}:{FA+4*s_+1}], v{vTR} offset:{o}")
            a(f"ds_read_b64_tr_b16 v[{FA+4*s_+2}:{FA+4*s_+3}], v{vTR} offset:{o+512}")
            a(f"ds_read_b128 v[{FB+4*s_}:{FB+4*s_+3}], v{vCB+s_} offset:{coff}")
    def mfma(s_):
        a(f"v_mfma_f32_32x32x16_bf16 v[{ACC}:{ACC+15}], v[{FA+4*s_}:{FA+4*s_+3}], v[{FB+4*s_}:{FB+4*s_+3}], v[{ACC}:{ACC+15}]")
    stamp(a, 3)
    tbl_read(0)
    a("s_waitcnt lgkmcnt(0)")
    g0()
    a("s_waitcnt vmcnt(40)")
    for q in range(4): corr_pair(0, q)
    stage_write(0)
    a("s_waitcnt vmcnt(38)")
    a("s_waitcnt lgkmcnt(0)")
    a("s_barrier")
    for i in range(8):
        if i == 0: stamp(a, 4)
        if i == 4: stamp(a, 5)
        if i in (4, 7):
            for s_ in range(4): a(f"v_xor_b32 v{vCB+s_}, 0x10000, v{vCB+s_}")
        if i == 1: issue_c(7)
        if i < 7:
            k = i + 1
            tbl_read(k)
            frag_reads(i)
            a("s_waitcnt lgkmcnt(12)")
            g0()
            extra = 2 if i >= 1 else 0
            hw = (42 - (4*k + 2) if k < 7 else 12) + extra
            a(f"s_waitcnt vmcnt({hw})")
            for q in range(4):
                corr_pair(k, q)
                a(f"s_waitcnt lgkmcnt({9 - 3*q})")
                mfma(q)
            stage_write(k)
            cw = (42 - (4*k + 4) + extra) if k < 7 else 0
            a(f"s_waitcnt vmcnt({cw})")
            a("s_waitcnt lgkmcnt(0)")
            a("s_barrier")
        else:
            frag_reads(i)
            for q in range(4):
                a(f"s_waitcnt lgkmcnt({9 - 3*q})")
                mfma(q)
    stamp(a, 6)
    a(f"s_cmp_eq_u32 s{KH}, 1")
    a("s_cbranch_scc0 L_P2_noswap")
    for r in range(8): a(f"v_swap_b32 v{ACC+r}, v{ACC+8+r}")
    a.label("L_P2_noswap")
    a(f"""
    v_lshlrev_b32 v26, 4, v1
    s_lshl_b32 s54, s{W}, 11
    s_add_u32 s54, s54, {RED}
    v_add_u32 v27, s54, v26
    s_xor_b32 s54, s{W}, 4
    s_lshl_b32 s54, s54, 11
    s_add_u32 s54, s54, {RED}
    v_add_u32 v26, s54, v26
    ds_write_b128 v27, v[{ACC+8}:{ACC+11}]
    ds_write_b128 v27, v[{ACC+12}:{ACC+15}] offset:1024
    s_waitcnt lgkmcnt(0)
    s_barrier
    ds_read_b128 v[96:99], v26
    ds_read_b128 v[100:103], v26 offset:1024
    v_lshlrev_b32 v{DK}, 16, v{DK}
    """)
    XD, OM, BB = 104, 112, 120
    for e in range(8):
        a(f"v_lshlrev_b32 v{XE+e}, 16, v{XE+e}")
        a(f"v_mul_f32 v{XE+e}, v{XE+e}, v{DK}")
    for q in range(4):
        a(f"v_cvt_pk_bf16_f32 v26, v{XE+2*q}, v{XE+2*q+1}")
        a(f"v_lshlrev_b32 v{XD+2*q}, 16, v26")
        a(f"v_and_b32 v{XD+2*q+1}, 0xffff0000, v26")
        a(f"v_sub_f32 v27, 1.0, v{GE+2*q}")
        a(f"v_sub_f32 v28, 1.0, v{GE+2*q+1}")
        a(f"v_cvt_pk_bf16_f32 v26, v27, v28")
        a(f"v_lshlrev_b32 v{OM+2*q}, 16, v26")
        a(f"v_and_b32 v{OM+2*q+1}, 0xffff0000, v26")
        a(f"v_lshlrev_b32 v27, 16, v{BE+q}")
        a(f"v_and_b32 v28, 0xffff0000, v{BE+q}")
        a(f"v_mul_f32 v27, v27, v{OM+2*q}")
        a(f"v_mul_f32 v28, v28, v{OM+2*q+1}")
        a(f"v_cvt_pk_bf16_f32 v26, v27, v28")
        a(f"v_lshlrev_b32 v{BB+2*q}, 16, v26")
        a(f"v_and_b32 v{BB+2*q+1}, 0xffff0000, v26")
    a(f"""
    s_lshl_b32 s54, s{L0}, 11
    s_lshl_b32 s55, s{D0}, 2
    s_add_u32 s54, s54, s55
    s_waitcnt lgkmcnt(0)
    """)
    for e in range(8):
        a(f"v_add_f32 v{ACC+e}, v{ACC+e}, v{96+e}")
        a(f"v_fma_f32 v{ACC+e}, v{ACC+e}, 2.0, v{XD+e}")
        a(f"v_fma_f32 v{ACC+e}, v{GE+e}, v{ACC+e}, v{BB+e}")
        a(f"buffer_store_dword v{ACC+e}, v{vOo}, s[20:23], s54 offen")
        if e < 7: a("s_add_u32 s54, s54, 2048")
    stamp(a, 7)
    stamp_flush(a, 1, 8)
    a.label("L_P2_end")
    a("s_endpgm")
    return a.text()
```

```python
import hazard
LOG2E = 0x3fb8aa3b
INV2PI = 0x3e22f983

WS_HT  = 0
WS_BT  = 4 << 20
WS_E   = 6 << 20
WS_G   = WS_E + 131072
WS_STAMP = (6 << 20) + (512 << 10)
WS_SIZE = 7 << 20
STAMPS = False
DBGSTAMPS = False

class Asm:
    def __init__(self):
        self.lines = []
    def __call__(self, s):
        for l in s.strip('\n').split('\n'):
            l = l.strip()
            if not l: continue
            if l.endswith(':') and ' ' not in l: self.lines.append(l)
            else: self.lines.append('    ' + l)
    def label(self, n): self.lines.append(n + ':')
    def c(self, s): self.lines.append('    ; ' + s)
    def text(self, fix=True):
        L = hazard.fix(self.lines) if fix else self.lines
        return '\n'.join(L) + '\n'

def vr(b, n=1):
    return f"v{b}" if n == 1 else f"v[{b}:{b+n-1}]"
def sr(b, n=1):
    return f"s{b}" if n == 1 else f"s[{b}:{b+n-1}]"

def srd(a, base, size, ptr=None):
    if ptr is not None and ptr != base:
        a(f"s_mov_b32 s{base}, s{ptr}")
        a(f"s_mov_b32 s{base+1}, s{ptr+1}")
    a(f"s_mov_b32 s{base+2}, {size:#x}")
    a(f"s_mov_b32 s{base+3}, 0x20000")

def cmul(a, dr, di, ar, ai, br, bi, t0, t1):
    a(f"v_mul_f32 v{t0}, v{ai}, v{bi}")
    a(f"v_mul_f32 v{t1}, v{ai}, v{br}")
    if dr not in (ar, bi):
        a(f"v_fma_f32 v{dr}, v{ar}, v{br}, -v{t0}")
        a(f"v_fma_f32 v{di}, v{ar}, v{bi}, v{t1}")
    else:
        assert di not in (ar, br), (dr, di, ar, ai, br, bi)
        a(f"v_fma_f32 v{di}, v{ar}, v{bi}, v{t1}")
        a(f"v_fma_f32 v{dr}, v{ar}, v{br}, -v{t0}")

def csq(a, dr, di, ar, ai, t0):
    a(f"v_mul_f32 v{t0}, v{ai}, v{ai}")
    if di == ai:
        a(f"v_mul_f32 v{di}, v{ar}, v{ai}")
        a(f"v_add_f32 v{di}, v{di}, v{di}")
    else:
        a(f"v_add_f32 v{di}, v{ai}, v{ai}")
        a(f"v_mul_f32 v{di}, v{ar}, v{di}")
    a(f"v_fma_f32 v{dr}, v{ar}, v{ar}, -v{t0}")

def rbf(a, d, s):
    a(f"v_cvt_pk_bf16_f32 v{d}, v{s}, v{s}")
    a(f"v_and_b32 v{d}, 0xffff0000, v{d}")

def cexp(a, dr, di, er, ph, m, t0, t1):
    if m == '1.0':
        a(f"v_exp_f32 v{t0}, v{er}")
        a(f"v_fract_f32 v{t1}, v{ph}")
    else:
        a(f"v_mul_f32 v{t0}, {m}, v{er}")
        a(f"v_mul_f32 v{t1}, {m}, v{ph}")
        a(f"v_exp_f32 v{t0}, v{t0}")
        a(f"v_fract_f32 v{t1}, v{t1}")
    a(f"v_cos_f32 v{dr}, v{t1}")
    a(f"v_sin_f32 v{di}, v{t1}")
    a(f"v_mul_f32 v{dr}, v{dr}, v{t0}")
    a(f"v_mul_f32 v{di}, v{di}, v{t0}")

def fhex(x):
    import struct
    return "0x%08x" % struct.unpack("<I", struct.pack("<f", x))[0]

def kernel_head(name):
    return f""".globl {name}
.p2align 8
.type {name},@function
{name}:
"""
def kernel_desc(name, nv, acc=None, ns=100):
    acc = acc or nv
    return f""".amdhsa_kernel {name}
  .amdhsa_next_free_vgpr {nv}
  .amdhsa_next_free_sgpr {ns}
  .amdhsa_accum_offset {acc}
  .amdhsa_group_segment_fixed_size 0
  .amdhsa_kernarg_size 160
  .amdhsa_user_sgpr_count 2
  .amdhsa_user_sgpr_kernarg_segment_ptr 1
  .amdhsa_system_sgpr_workgroup_id_x 1
  .amdhsa_float_denorm_mode_32 3
.end_amdhsa_kernel
"""

def stamp(a, k):
    import common
    if common.STAMPS:
        a(f"s_memrealtime s[{76+2*k}:{77+2*k}]")
        if k == 0: a("s_memtime s[72:73]")

def stamp_flush(a, phase, n, wsrd=16, wavereg=32):
    import common
    if not common.STAMPS: return
    a("s_waitcnt vmcnt(0)")
    stamp(a, n)
    a("s_memtime s[98:99]")
    a("s_getreg_b32 s74, hwreg(HW_REG_XCC_ID)")
    a("s_waitcnt lgkmcnt(0)")
    a("s_sub_u32 s98, s98, s72")
    a(f"s_lshl_b32 s75, s2, 3")
    a(f"s_add_u32 s75, s75, s{wavereg}")
    a(f"s_lshl_b32 s75, s75, 7")
    a(f"s_add_u32 s75, s75, {WS_STAMP + phase*262144:#x}")
    a("v_mov_b32 v3, 0")
    a("s_mov_b64 exec, 1")
    for k in range(n+1):
        a(f"v_mov_b32 v4, s{76+2*k}")
        a(f"v_mov_b32 v5, s{77+2*k}")
        a(f"buffer_store_dwordx2 v[4:5], v3, s[{wsrd}:{wsrd+3}], s75 offen offset:{8*k}")
        a("s_nop 1")
    a("v_mov_b32 v4, s98")
    a("v_mov_b32 v5, s74")
    a(f"buffer_store_dwordx2 v[4:5], v3, s[{wsrd}:{wsrd+3}], s75 offen offset:120")
    a("s_waitcnt vmcnt(0)")

class VM:
    def __init__(self, a): self.a = a; self.ops = []
    def op(self, tag, text):
        self.a(text); self.ops.append(tag)
    def wait(self, *tags):
        idx = [i for i, t in enumerate(self.ops) if t in tags]
        if not idx: return
        last = max(idx)
        n = len(self.ops) - 1 - last
        assert n <= 63
        self.a(f"s_waitcnt vmcnt({n})")

def P(r): return f"v[{r}:{r+1}]"
def pk_cmul(a, d, s, w):
    assert d % 2 == 0 and s % 2 == 0 and w % 2 == 0 and d != s
    a(f"v_pk_mul_f32 {P(d)}, {P(s)}, {P(w)} op_sel:[1,1] op_sel_hi:[1,0] neg_lo:[0,1]")
    a(f"v_pk_fma_f32 {P(d)}, {P(s)}, {P(w)}, {P(d)} op_sel_hi:[0,1,1]")
def pk_cmac(a, d, s, w):
    assert d % 2 == 0 and s % 2 == 0 and w % 2 == 0 and d != s
    a(f"v_pk_fma_f32 {P(d)}, {P(s)}, {P(w)}, {P(d)} op_sel:[1,1,0] op_sel_hi:[1,0,1] neg_lo:[0,1,0]")
    a(f"v_pk_fma_f32 {P(d)}, {P(s)}, {P(w)}, {P(d)} op_sel_hi:[0,1,1]")

class Buf(Asm):
    def items(self): return [l.strip() for l in self.lines]

def weave(a, main, inserts):
    for i in range(len(main)+1):
        for x in inserts.get(i, []): a(x)
        if i < len(main): a(main[i])
```

```python
from common import *

XCH = 131072
ZTAB = XCH + 8192
NONCE = ZTAB + 512
PART = XCH + 12288

def gen_A(a, SC="", exp=""):
    vm = VM(a)
    stamp(a, 0)
    a("""
    s_load_dwordx4 s[20:23], s[0:1], 8
    s_load_dwordx2 s[24:25], s[0:1], 56       ; A_log_dt
    s_load_dwordx2 s[8:9], s[0:1], 0          ; x
    s_load_dwordx4 s[28:31], s[0:1], 24
    s_load_dwordx2 s[26:27], s[0:1], 128      ; gate_w
    s_load_dwordx4 s[64:67], s[0:1], 144
    s_memrealtime s[68:69]
    v_lshrrev_b32 v2, 6, v0
    v_and_b32 v1, 63, v0
    s_and_b32 s33, s2, 7
    v_readfirstlane_b32 s32, v2
    s_lshr_b32 s34, s2, 3
    s_sub_u32 s34, s34, 16                    ; i
    s_lshr_b32 s35, s34, 2                    ; i>>2
    s_and_b32 s36, s34, 3                     ; i&3
    s_lshr_b32 s37, s33, 1
    s_lshl_b32 s37, s37, 2
    s_add_u32 s37, s37, s35                   ; chunk c
    s_and_b32 s38, s33, 1
    s_lshl_b32 s38, s38, 2
    s_add_u32 s38, s38, s36                   ; slice s
    s_add_u32 s39, s35, s36
    s_and_b32 s39, s39, 3
    s_lshl_b32 s39, s39, 1
    """)
    C, S, ROT, W = 37, 38, 39, 32
    vXo0, vXo1, vBo0, vBo1 = 4, 5, 6, 7
    a("""
    v_lshrrev_b32 v8, 3, v1                   ; r8
    v_and_b32 v9, 7, v1                       ; sig
    v_lshrrev_b32 v10, 1, v8                  ; r8>>1
    v_xor_b32 v11, v9, v10
    v_xor_b32 v12, 4, v11
    v_lshlrev_b32 v13, 10, v8                 ; r8*1024
    v_lshl_add_u32 v4, v11, 4, v13
    v_lshl_add_u32 v5, v12, 4, v13
    v_add_u32 v5, 0x2000, v5                  ; +8 rows
    """)
    a(f"""
    s_lshl_b32 s40, s{C}, 17
    s_lshl_b32 s41, s{W}, 14
    s_add_u32 s40, s40, s41
    s_and_b32 s42, s{W}, 3
    s_lshl_b32 s42, s42, 14
    s_lshl_b32 s43, s{S}, 16
    s_add_u32 s42, s42, s43
    v_add_u32 v6, s42, v4
    v_add_u32 v7, s42, v5
    v_add_u32 v4, s40, v4
    v_add_u32 v5, s40, v5
    """)
    vP = 14
    a(f"""
    s_and_b32 s44, s{W}, 1                    ; ws
    s_lshr_b32 s45, s{W}, 1                   ; wr
    s_lshl_b32 s46, s{S}, 6
    s_lshl_b32 s47, s44, 5
    s_add_u32 s46, s46, s47
    v_and_b32 v{vP}, 31, v1
    v_add_u32 v{vP}, s46, v{vP}               ; p
    v_lshlrev_b32 v15, 1, v{vP}
    s_lshl_b32 s48, s{C}, 7
    s_lshl_b32 s49, s{S}, 4
    s_add_u32 s48, s48, s49
    s_lshl_b32 s49, s{W}, 1
    s_add_u32 s48, s48, s49
    s_lshl_b32 s49, s48, 10
    v_lshlrev_b32 v3, 4, v1
    s_lshl_b32 s50, s{W}, 11
    """)
    WS_, WR = 44, 45
    a("s_waitcnt lgkmcnt(0)")
    srd(a, 8, 0x200000)
    a(f"""
    s_cmp_lt_u32 s{W}, 4
    s_cselect_b32 s12, s28, s30
    s_cselect_b32 s13, s29, s31
    """)
    srd(a, 12, 0x80000)
    srd(a, 16, WS_SIZE, ptr=66)
    def issue(i):
        slot = i & 3
        a(f"s_add_u32 s51, s{ROT}, {i}")
        a("s_and_b32 s51, s51, 7")
        a("s_lshl_b32 s51, s51, 7")
        base = slot*32768
        for (off, vo, sr_) in ((0, vXo0, 8), (16384, vBo0, 12), (1024, vXo1, 8), (16384+1024, vBo1, 12)):
            a(f"s_add_u32 m0, s50, {base+off}")
            vm.op(f"c{i}", f"buffer_load_dwordx4 v{vo}, s[{sr_}:{sr_+3}], s51 offen lds")
    vLre, vLim, vLdt = 16, 17, 18
    vGX0, vGX1, vGW = 20, 24, 28
    vm.op('par', f"global_load_ushort v{vLdt}, v15, s[24:25]")
    vm.op('par', f"global_load_ushort v{vLre}, v15, s[20:21]")
    vm.op('par', f"global_load_ushort v{vLim}, v15, s[22:23]")
    issue(0)
    a("s_barrier")
    issue(1)
    a(f"""
    s_cmp_eq_u32 s2, 128
    s_cbranch_scc0 L_A_nonw
    s_cmp_eq_u32 s{W}, 0
    s_cbranch_scc0 L_A_nonw
    s_or_b32 s70, s68, 1
    v_mov_b32 v32, s70
    v_lshlrev_b32 v33, 6, v1
    s_mov_b64 exec, 15
    global_store_dword v33, v32, s[64:65] sc1
    s_mov_b64 exec, -1
    L_A_nonw:
    """)
    stamp(a, 1)
    a(f"""
    v_mov_b32 v32, 0
    v_mov_b32 v33, 0
    v_lshlrev_b32 v34, 3, v0
    v_add_u32 v34, {XCH}, v34
    s_cmp_lt_u32 s{W}, 7
    s_cbranch_scc0 L_A_nozero
    ds_write_b64 v34, v[32:33]
    L_A_nozero:
    """)
    vXA, vBA = 36, 40
    a(f"""
    v_and_b32 v8, 31, v1                      ; m
    v_lshrrev_b32 v9, 5, v1                   ; kg
    v_bfe_u32 v10, v8, 2, 1
    v_lshlrev_b32 v10, 4, v10                 ; 16*hi
    v_lshrrev_b32 v11, 3, v8
    v_lshl_add_u32 v10, v11, 1, v10           ; +2*j
    v_and_b32 v11, 1, v8
    v_lshl_add_u32 v10, v11, 3, v10           ; +8*(r&1)
    v_bfe_u32 v11, v8, 1, 1
    v_add_u32 v10, v10, v11                   ; +(r>>1)  -> t(m)
    v_bfe_u32 v11, v10, 1, 3                  ; key
    v_xor_b32 v11, v11, v9
    v_lshlrev_b32 v11, 4, v11
    s_lshl_b32 s54, s{WR}, 12                 ; 32*wr*128
    v_lshl_add_u32 v11, v10, 7, v11
    v_add_u32 v{vXA}, s54, v11
    v_bfe_u32 v11, v8, 1, 3
    v_xor_b32 v11, v11, v9
    v_lshlrev_b32 v11, 4, v11
    v_lshl_add_u32 v11, v8, 7, v11
    s_lshl_b32 s54, s{WS_}, 12
    s_add_u32 s54, s54, 16384
    v_add_u32 v{vBA}, s54, v11
    """)
    for st in range(1, 4):
        a(f"v_xor_b32 v{vXA+st}, {32*st}, v{vXA}")
        a(f"v_xor_b32 v{vBA+st}, {32*st}, v{vBA}")
    ACR, ACI = 64, 80
    for r in range(32): a(f"v_mov_b32 v{ACR+r}, 0")
    vm.wait('par')
    vEr, vPh, vLr, vLi, vCr, vCi, vL16r, vL16i, vNLi, vNCi = 44, 45, 46, 47, 48, 49, 50, 51, 58, 59
    T0, T1, T2, T3 = 52, 53, 54, 55
    a(f"""
    v_lshlrev_b32 v{vLdt}, 16, v{vLdt}
    v_lshlrev_b32 v{vLre}, 16, v{vLre}
    v_lshlrev_b32 v{vLim}, 16, v{vLim}
    v_mul_f32 v{T0}, {LOG2E:#x}, v{vLdt}
    v_exp_f32 v{T0}, v{T0}
    """)
    rbf(a, T0, T0)
    a(f"""
    v_mul_f32 v{vEr}, v{T0}, v{vLre}
    v_mul_f32 v{vPh}, v{T0}, v{vLim}
    v_mul_f32 v{vEr}, {LOG2E:#x}, v{vEr}
    v_mul_f32 v{vPh}, {INV2PI:#x}, v{vPh}
    """)
    cexp(a, vLr, vLi, vEr, vPh, '1.0', T0, T1)
    a(f"""
    v_add_f32 v{T0}, -1.0, v{vLr}
    v_mul_f32 v{T1}, v{vLre}, v{vLre}
    v_fmac_f32 v{T1}, v{vLim}, v{vLim}
    v_rcp_f32 v{T1}, v{T1}
    v_mul_f32 v{T2}, v{T0}, v{vLre}
    v_fmac_f32 v{T2}, v{vLi}, v{vLim}
    v_mul_f32 v{T3}, v{T0}, v{vLim}
    v_fma_f32 v{T3}, v{vLi}, v{vLre}, -v{T3}
    v_mul_f32 v{vCr}, v{T2}, v{T1}
    v_mul_f32 v{vCi}, v{T3}, v{T1}
    v_xor_b32 v{vNLi}, 0x80000000, v{vLi}
    v_xor_b32 v{vNCi}, 0x80000000, v{vCi}
    """)
    cexp(a, vL16r, vL16i, vEr, vPh, fhex(16.0), T0, T1)
    vL8 = 32
    cexp(a, vL8, vL8+1, vEr, vPh, fhex(8.0), T0, T1)
    vLS = 60
    a(f"""
    v_lshrrev_b32 v8, 5, v1                   ; hi
    s_lshl_b32 s54, s{WR}, 1
    v_add_u32 v8, s54, v8                     ; seg
    v_lshlrev_b32 v9, 4, v8
    v_cvt_f32_u32 v9, v9
    """)
    cexp(a, vLS, vLS+1, vEr, vPh, "v9", T0, T1)
    a(f"""
    s_cmp_eq_u32 s{WR}, 0
    s_cbranch_scc0 L_A_noz
    v_and_b32 v9, 31, v1
    s_lshl_b32 s54, s{WS_}, 5
    v_add_u32 v9, s54, v9
    v_lshlrev_b32 v9, 3, v9
    v_add_u32 v9, {ZTAB}, v9
    ds_write_b64 v9, v[{vEr}:{vPh}]
    L_A_noz:
    """)
    stamp(a, 2)
    FS = [96, 144]
    def fr(buf, st, kind): return FS[buf] + 12*st + 4*kind
    def read_list(i):
        off = (i & 1)*32768; buf = i & 1; L = []
        for st in range(4):
            L.append(f"ds_read_b128 v[{fr(buf,st,0)}:{fr(buf,st,0)+3}], v{vXA+st} offset:{off}")
            L.append(f"ds_read_b128 v[{fr(buf,st,1)}:{fr(buf,st,1)+3}], v{vBA+st} offset:{off}")
            L.append(f"ds_read_b128 v[{fr(buf,st,2)}:{fr(buf,st,2)+3}], v{vBA+st} offset:{off+8192}")
        return L
    def toggle():
        for r in range(4):
            a(f"v_xor_b32 v{vXA+r}, 0x10000, v{vXA+r}")
            a(f"v_xor_b32 v{vBA+r}, 0x10000, v{vBA+r}")
    vm.wait('c0')
    a("s_barrier")
    stamp(a, 3)
    issue(2)
    for x in read_list(0): a(x)
    for i in range(8):
        if i == 4: stamp(a, 4)
        buf = i & 1
        if i < 7:
            vm.wait(f'c{i+1}')
            a("s_waitcnt lgkmcnt(0)")
            a("s_barrier")
            if (i+1) in (2, 4, 6): toggle()
            if i == 2:
                a(f"""
                s_cmp_eq_u32 s{W}, 0
                s_cbranch_scc0 L_A_nonr
                s_bfe_u32 s54, s2, 0x20003
                s_lshl_b32 s54, s54, 6
                v_mov_b32 v34, s54
                global_load_dword v35, v34, s[64:65] sc1
                L_A_nonr:
                """)
            if i + 3 < 8: issue(i+3)
            if i == 5:
                vm.op('gate', f"global_load_dwordx4 v[{vGW}:{vGW+3}], v3, s[26:27]")
                vm.op('gate', f"buffer_load_dwordx4 v[{vGX0}:{vGX0+3}], v3, s[8:11], s49 offen")
                vm.op('gate', f"buffer_load_dwordx4 v[{vGX1}:{vGX1+3}], v3, s[8:11], s49 offen offset:1024")
            if i == 4:
                a(f"""
                s_cmp_eq_u32 s{W}, 0
                s_cbranch_scc0 L_A_nonc
                s_mov_b32 s55, 0x8000
                L_A_nonp:
                v_readfirstlane_b32 s70, v35
                s_cmp_lg_u32 s70, 0
                s_cbranch_scc1 L_A_nong
                global_load_dword v35, v34, s[64:65] sc1
                s_waitcnt vmcnt(0)
                s_sub_u32 s55, s55, 1
                s_cmp_lg_u32 s55, 0
                s_cbranch_scc1 L_A_nonp
                L_A_nong:
                v_mov_b32 v34, {NONCE}
                ds_write_b32 v34, v35
                L_A_nonc:
                """)
            rl = read_list(i+1)
        else:
            a("s_waitcnt lgkmcnt(0)")
            rl = []
        mf = []
        for st in range(4):
            A_, Br, Bi = fr(buf,st,0), fr(buf,st,1), fr(buf,st,2)
            mf.append(f"v_mfma_f32_32x32x16_bf16 v[{ACR}:{ACR+15}], v[{A_}:{A_+3}], v[{Br}:{Br+3}], v[{ACR}:{ACR+15}]")
            mf.append(f"v_mfma_f32_32x32x16_bf16 v[{ACI}:{ACI+15}], v[{A_}:{A_+3}], v[{Bi}:{Bi+3}], v[{ACI}:{ACI+15}]")
        ins = {}
        for t, x in enumerate(rl):
            ins.setdefault(min(8, 1 + (t*7)//12), []).append(x)
        weave(a, mf, ins)
    stamp(a, 5)
    vTag, vZ = 35, 62
    a(f"""
    v_mov_b32 v34, {NONCE}
    ds_read_b32 v{vTag}, v34
    v_lshlrev_b32 v34, 3, v1
    v_add_u32 v34, {ZTAB}, v34
    ds_read_b64 v[{vZ}:{vZ+1}], v34
    """)
    BC = lambda k, hi: (f"op_sel:[{k}]", )
    CF = vCr
    LM = vLr
    TP = 52
    for s_ in range(8):
        R, I = ACR+2*s_, ACI+2*s_
        a(f"v_pk_mul_f32 {P(TP)}, {P(R)}, {P(CF)} op_sel:[0,1] op_sel_hi:[1,1]")
        a(f"v_pk_mul_f32 {P(R)}, {P(R)}, {P(CF)} op_sel:[0,0] op_sel_hi:[1,0]")
        a(f"v_pk_fma_f32 {P(R)}, {P(I)}, {P(CF)}, {P(R)} op_sel:[0,1,0] op_sel_hi:[1,1,1] neg_lo:[0,1,0] neg_hi:[0,1,0]")
        a(f"v_pk_fma_f32 {P(I)}, {P(I)}, {P(CF)}, {P(TP)} op_sel:[0,0,0] op_sel_hi:[1,0,1]")
    ER, EI, U, V = 112, 114, 116, 118
    a(f"v_mov_b64 {P(ER)}, {P(ACR)}")
    a(f"v_mov_b64 {P(EI)}, {P(ACI)}")
    for s_ in range(1, 8):
        R, I = ACR+2*s_, ACI+2*s_
        a(f"v_pk_fma_f32 {P(U)}, {P(EI)}, {P(LM)}, {P(R)} op_sel:[0,1,0] op_sel_hi:[1,1,1] neg_lo:[0,1,0] neg_hi:[0,1,0]")
        a(f"v_pk_fma_f32 {P(V)}, {P(ER)}, {P(LM)}, {P(I)} op_sel:[0,1,0] op_sel_hi:[1,1,1]")
        a(f"v_pk_fma_f32 {P(ER)}, {P(ER)}, {P(LM)}, {P(U)} op_sel:[0,0,0] op_sel_hi:[1,0,1]")
        a(f"v_pk_fma_f32 {P(EI)}, {P(EI)}, {P(LM)}, {P(V)} op_sel:[0,0,0] op_sel_hi:[1,0,1]")
    eR, eI = 56, 57
    a(f"""
    v_fma_f32 v{eR}, v{vL8}, v{ER}, v{ER+1}
    v_fma_f32 v{eI}, v{vL8}, v{EI}, v{EI+1}
    v_fma_f32 v{eR}, -v{vL8+1}, v{EI}, v{eR}
    v_fma_f32 v{eI}, v{vL8+1}, v{ER}, v{eI}
    v_and_b32 v9, 31, v1
    s_lshl_b32 s54, s{WS_}, 5
    v_add_u32 v9, s54, v9
    v_lshlrev_b32 v10, 3, v9
    v_lshl_add_u32 v9, v8, 9, v10
    v_add_u32 v9, {XCH}, v9
    ds_write_b64 v9, v[{eR}:{eI}] offset:{7*512}
    s_waitcnt lgkmcnt(0)
    s_barrier
    """)
    EB = 96
    for i in range(7):
        a(f"ds_read_b64 v[{EB+2*i}:{EB+2*i+1}], v9 offset:{i*512}")
    cH = EB
    for i in range(1, 7):
        a(f"s_waitcnt lgkmcnt({6-i})")
        pk_cmac(a, EB+2*i, cH, vL16r)
        cH = EB+2*i
    a(f"""
    s_cmp_eq_u32 s{WR}, 3
    s_cbranch_scc0 L_A_noE
    """)
    pk_cmac(a, eR, cH, vL16r)
    a(f"""
    v_mov_b32 v136, v{eR}
    v_mov_b32 v137, v{vTag}
    v_mov_b32 v138, v{eI}
    v_mov_b32 v139, v{vTag}
    s_lshl_b32 s54, s{C}, 13
    s_add_u32 s54, s54, {WS_E:#x}
    v_lshlrev_b32 v140, 4, v{vP}
    s_mov_b32 exec_lo, 0
    buffer_store_dwordx4 v[136:139], v140, s[16:19], s54 offen sc1
    s_mov_b32 exec_lo, -1
    L_A_noE:
    """)
    stamp(a, 6)
    WA1, WA2 = 144, 146
    a(f"""
    s_sub_u32 s56, s{C}, 1
    s_sub_u32 s56, s56, s{W}
    s_sub_u32 s57, s56, 8                     ; m2
    s_max_i32 s58, s56, 0
    s_max_i32 s59, s57, 0
    s_lshl_b32 s58, s58, 7
    s_lshl_b32 s59, s59, 7
    v_cvt_f32_u32 v141, s58
    v_cvt_f32_u32 v142, s59
    """)
    cexp(a, WA1, WA1+1, vZ, vZ+1, "v141", T0, T1)
    cexp(a, WA2, WA2+1, vZ, vZ+1, "v142", T0, T1)
    GT0, GT1, GT2, GT3 = 124, 125, 126, 127
    vm.wait('gate')
    def gate_row(X, dst):
        for k in range(4):
            a(f"v_lshlrev_b32 v{GT0}, 16, v{X+k}")
            a(f"v_lshlrev_b32 v{GT1}, 16, v{vGW+k}")
            a(f"v_and_b32 v{GT2}, 0xffff0000, v{X+k}")
            a(f"v_and_b32 v{GT3}, 0xffff0000, v{vGW+k}")
            if k == 0: a(f"v_mul_f32 v{dst}, v{GT0}, v{GT1}")
            else: a(f"v_fmac_f32 v{dst}, v{GT0}, v{GT1}")
            a(f"v_fmac_f32 v{dst}, v{GT2}, v{GT3}")
    G0, G1 = 148, 149
    gate_row(vGX0, G0)
    gate_row(vGX1, G1)
    for n in (8, 4, 2, 1):
        a(f"v_add_f32_dpp v{G0}, v{G0}, v{G0} row_ror:{n} row_mask:0xf bank_mask:0xf")
        a(f"v_add_f32_dpp v{G1}, v{G1}, v{G1} row_ror:{n} row_mask:0xf bank_mask:0xf")
    a(f"""
    v_readlane_b32 s56, v{G0}, 0
    v_readlane_b32 s57, v{G0}, 16
    v_readlane_b32 s58, v{G0}, 32
    v_readlane_b32 s59, v{G0}, 48
    v_readlane_b32 s60, v{G1}, 0
    v_readlane_b32 s61, v{G1}, 16
    v_readlane_b32 s62, v{G1}, 32
    v_readlane_b32 s63, v{G1}, 48
    v_mov_b32 v{G0}, s56
    v_mov_b32 v{G1}, s60
    v_add_f32 v{G0}, s57, v{G0}
    v_add_f32 v{G1}, s61, v{G1}
    v_add_f32 v{G0}, s58, v{G0}
    v_add_f32 v{G1}, s62, v{G1}
    v_add_f32 v{G0}, s59, v{G0}
    v_add_f32 v{G1}, s63, v{G1}
    v_cmp_eq_u32 vcc, 1, v1
    v_cndmask_b32 v{G0}, v{G0}, v{G1}, vcc
    """)
    rbf(a, G0, G0)
    a(f"""
    v_mul_f32 v{G0}, {LOG2E:#x}, v{G0}
    v_exp_f32 v{G0}, -v{G0}
    v_add_f32 v{G0}, 1.0, v{G0}
    v_rcp_f32 v{G0}, v{G0}
    v_add_u32 v{G1}, s48, v1
    v_lshlrev_b32 v{G1}, 2, v{G1}
    v_add_u32 v{G1}, {WS_G:#x}, v{G1}
    """)
    rbf(a, G0, G0)
    a(f"""
    s_mov_b64 exec, 3
    buffer_store_dword v{G0}, v{G1}, s[16:19], 0 offen {SC}
    s_mov_b64 exec, -1
    """)
    E1, E2 = 124, 128
    PS = 132
    a(f"""
    v_mov_b32 v{PS}, 0
    v_mov_b32 v{PS+1}, 0
    s_lshl_b32 s56, s{S}, 10                  ; 64 s *16
    s_add_u32 s56, s56, {WS_E:#x}
    s_lshl_b32 s57, s{W}, 13
    s_add_u32 s56, s56, s57                   ; E[w][64s]
    s_add_u32 s57, s56, {8*8192}              ; E[w+8][64s]
    v_lshlrev_b32 v150, 4, v1
    v_readfirstlane_b32 s71, v{vTag}
    s_cmp_lt_u32 s{W}, s{C}
    s_cbranch_scc0 L_A_pdone
    s_add_u32 s58, s{W}, 8
    s_cmp_lt_u32 s58, s{C}
    s_cselect_b32 s57, s57, s56
    s_cselect_b32 s59, 1, 0
    s_mov_b32 s55, 0x8000
    L_A_poll:
    buffer_load_dwordx4 v[{E1}:{E1+3}], v150, s[16:19], s56 offen sc1
    buffer_load_dwordx4 v[{E2}:{E2+3}], v150, s[16:19], s57 offen sc1
    s_waitcnt vmcnt(0)
    v_cmp_ne_u32 vcc, s71, v{E1+1}
    v_cmp_ne_u32 s[60:61], s71, v{E1+3}
    s_or_b64 vcc, vcc, s[60:61]
    v_cmp_ne_u32 s[60:61], s71, v{E2+1}
    v_cmp_ne_u32 s[62:63], s71, v{E2+3}
    s_or_b64 vcc, vcc, s[60:61]
    s_or_b64 vcc, vcc, s[62:63]
    s_cbranch_vccz L_A_pok
    s_sub_u32 s55, s55, 1
    s_cmp_lg_u32 s55, 0
    s_cbranch_scc1 L_A_poll
    L_A_pok:
    v_mov_b32 v{E1+1}, v{E1+2}
    v_mov_b32 v{E2+1}, v{E2+2}
    """)
    pk_cmul(a, PS, E1, WA1)
    a("s_cmp_eq_u32 s59, 1")
    a("s_cbranch_scc0 L_A_pdone")
    pk_cmac(a, PS, E2, WA2)
    a(f"""
    L_A_pdone:
    s_lshl_b32 s54, s{W}, 9
    s_add_u32 s54, s54, {PART}
    v_lshlrev_b32 v150, 3, v1
    v_add_u32 v150, s54, v150
    ds_write_b64 v150, v[{PS}:{PS+1}]
    v_add_u32 v150, {PART}, v10
    v_lshrrev_b32 v8, 5, v1
    v_lshlrev_b32 v8, 8, v8                   ; hi*256
    v_lshrrev_b32 v9, 3, v{vP}
    v_lshl_add_u32 v8, v9, 15, v8             ; (p>>3)*32768
    v_and_b32 v9, 7, v{vP}
    v_lshrrev_b32 v11, 5, v1
    v_lshlrev_b32 v11, 2, v11
    v_xor_b32 v9, v9, v11                     ; (p&7) ^ (4 hi)
    v_lshl_add_u32 v8, v9, 4, v8
    s_lshl_b32 s54, s{C}, 11                  ; 16c*128
    s_lshl_b32 s55, s{WR}, 9                  ; 4wr*128
    s_add_u32 s54, s54, s55
    s_add_u32 s55, s54, 0x200000
    s_waitcnt lgkmcnt(0)
    s_barrier
    """)
    stamp(a, 7)
    PB = 152
    for w in range(8):
        a(f"ds_read_b64 v[{PB+2*w}:{PB+2*w+1}], v150 offset:{w*512}")
    for w in range(1, 8):
        a(f"s_waitcnt lgkmcnt({7-w})")
        a(f"v_pk_add_f32 {P(PB)}, {P(PB)}, {P(PB+2*w)}")
    pk_cmac(a, cH, PB, vLS)
    PR, PI = 120, 122
    a(f"""
    v_mov_b32 v{PR}, v{cH}
    v_mov_b32 v{PI}, v{cH+1}
    v_fma_f32 v{PR+1}, v{vL8}, v{cH}, v{ER}
    v_fma_f32 v{PI+1}, v{vL8}, v{cH+1}, v{EI}
    v_fma_f32 v{PR+1}, -v{vL8+1}, v{cH+1}, v{PR+1}
    v_fma_f32 v{PI+1}, v{vL8+1}, v{cH}, v{PI+1}
    """)
    pr, pi = PR, PI
    for s_ in range(8):
        R, I = ACR+2*s_, ACI+2*s_
        a(f"v_pk_fma_f32 {P(R)}, {P(pr)}, {P(LM)}, {P(R)} op_sel:[0,0,0] op_sel_hi:[1,0,1]")
        a(f"v_pk_fma_f32 {P(I)}, {P(pi)}, {P(LM)}, {P(I)} op_sel:[0,0,0] op_sel_hi:[1,0,1]")
        a(f"v_pk_fma_f32 {P(R)}, {P(pi)}, {P(LM)}, {P(R)} op_sel:[0,1,0] op_sel_hi:[1,1,1] neg_lo:[0,1,0] neg_hi:[0,1,0]")
        a(f"v_pk_fma_f32 {P(I)}, {P(pr)}, {P(LM)}, {P(I)} op_sel:[0,1,0] op_sel_hi:[1,1,1]")
        pr, pi = R, I
    PK = 124
    for q in range(2):
        for j_ in range(4):
            a(f"v_cvt_pk_bf16_f32 v{PK+4*q+j_}, v{ACR+4*j_+q}, v{ACR+4*j_+2+q}")
        a(f"buffer_store_dwordx4 v[{PK+4*q}:{PK+4*q+3}], v8, s[16:19], s54 offen offset:{128*q} {SC}")
        for j_ in range(4):
            a(f"v_cvt_pk_bf16_f32 v{PK+8+4*q+j_}, -v{ACI+4*j_+q}, -v{ACI+4*j_+2+q}")
        a(f"buffer_store_dwordx4 v[{PK+8+4*q}:{PK+8+4*q+3}], v8, s[16:19], s55 offen offset:{128*q} {SC}")
    stamp(a, 8)
    stamp_flush(a, 0, 9)
    a("s_endpgm")
```

```python
from common import *

CH_TAB = 72*512
F_ROW0 = 56
KC_BASE = 64
KC_COPY = 4160
KC_CH = 4*KC_COPY
UT_BASE = KC_BASE + 4*KC_CH
UT_CH = 4608
RED_BASE = UT_BASE + 4*UT_CH

def g_row_index(a_, c):
    if a_ < 2:
        rg = 2*a_ + (c >> 2); e = c & 3
        return 0*16 + 4*rg + e
    if a_ >= 8:
        rg = (a_-8) >> 1; e = 2*((a_-8) & 1) + (1 if c == 8 else 0)
        return 1*16 + 4*rg + e
    if a_ >= 4:
        rg = a_-4; e = {0: 0, 4: 1, 8: 2}[c]
        return 2*16 + 4*rg + e
    rg = a_-2
    if c == 8: return 2*16 + 4*rg + 3
    return 3*16 + 4*rg + c//2

def cm(a, d, s, w):
    a(f"v_mul_f32 v{d[0]}, v{s[1]}, v{w[2]}")
    a(f"v_mul_f32 v{d[1]}, v{s[1]}, v{w[0]}")
    a(f"v_fmac_f32 v{d[0]}, v{s[0]}, v{w[0]}")
    a(f"v_fmac_f32 v{d[1]}, v{s[0]}, v{w[1]}")

def gen_B(a, SC=""):
    stamp(a, 0)
    a("""
    s_load_dwordx4 s[20:23], s[0:1], 80
    s_load_dwordx4 s[24:27], s[0:1], 96
    s_load_dwordx4 s[28:31], s[0:1], 112
    s_load_dwordx2 s[8:9], s[0:1], 0          ; x
    s_load_dwordx2 s[16:17], s[0:1], 152      ; ws
    v_lshrrev_b32 v2, 6, v0
    v_and_b32 v1, 63, v0
    s_and_b32 s33, s2, 7                      ; xcd j
    v_readfirstlane_b32 s32, v2               ; wave
    s_lshr_b32 s34, s2, 3                     ; i (0..15)
    s_lshl_b32 s35, s33, 6
    s_lshl_b32 s36, s34, 2
    s_add_u32 s35, s35, s36                   ; d0
    """)
    W, I, D0 = 32, 34, 35
    a(f"""
    s_lshr_b32 s37, s{W}, 1                   ; ch
    s_and_b32 s38, s{W}, 1
    s_add_u32 s39, s{D0}, s37                 ; d = d0 + ch
    v_and_b32 v3, 127, v0                     ; mode n
    s_lshl_b32 s40, s39, 8                    ; d*256 bytes
    v_lshl_add_u32 v4, v3, 1, s40
    s_lshl_b32 s41, s39, 1
    v_mov_b32 v5, s41                         ; d*2
    s_waitcnt lgkmcnt(0)
    """)
    CH, PAR, D = 37, 38, 39
    vLA, vAI, vCR, vCI, vLD, vDS = 8, 9, 10, 11, 12, 13
    a(f"""
    global_load_ushort v{vLA}, v4, s[20:21]
    global_load_ushort v{vLD}, v5, s[28:29]
    global_load_ushort v{vAI}, v4, s[22:23]
    global_load_ushort v{vCR}, v4, s[24:25]
    global_load_ushort v{vCI}, v4, s[26:27]
    global_load_ushort v{vDS}, v5, s[30:31]
    """)
    srd(a, 8, 0x200000)
    srd(a, 16, WS_SIZE)
    a(f"""
    s_lshl_b32 s42, s{I}, 7
    s_lshl_b32 s43, s{W}, 4
    s_add_u32 s42, s42, s43
    v_and_b32 v6, 15, v1
    v_add_u32 v6, s42, v6
    v_lshlrev_b32 v6, 10, v6
    s_lshl_b32 s44, s{D0}, 1                  ; d0*2 bytes
    v_lshlrev_b32 v7, 12, v0
    s_barrier
    buffer_load_dword v14, v6, s[8:11], s44 offen
    """)
    U = 16
    def gather(j):
        a(f"buffer_load_dwordx2 v[{U+2*j}:{U+2*j+1}], v7, s[8:11], s44 offen offset:{j*1024}")
    WA = 24
    a(f"""
    s_mul_i32 s45, s{CH}, {CH_TAB}
    v_lshlrev_b32 v3, 2, v3
    v_add_u32 v3, s45, v3
    """)
    for k in range(8):
        a(f"v_xor_b32 v{WA+k}, {k<<5}, v3")
    stamp(a, 1)
    a("s_waitcnt vmcnt(1)")
    ER, PH = 32, 33
    T0, T1 = 36, 37
    R0, R1 = 34, 38
    a(f"""
    v_lshlrev_b32 v{vLA}, 16, v{vLA}
    v_lshlrev_b32 v{vLD}, 16, v{vLD}
    v_mul_f32 v{vLA}, {LOG2E:#x}, v{vLA}
    v_mul_f32 v{vLD}, {LOG2E:#x}, v{vLD}
    v_exp_f32 v{vLA}, v{vLA}
    v_exp_f32 v{vLD}, v{vLD}
    v_lshlrev_b32 v{vAI}, 16, v{vAI}
    v_lshlrev_b32 v{vCR}, 16, v{vCR}
    v_lshlrev_b32 v{vCI}, 16, v{vCI}
    v_lshlrev_b32 v{vDS}, 16, v{vDS}
    """)
    rbf(a, vLA, vLA)
    rbf(a, vLD, vLD)
    a(f"""
    v_mul_f32 v{ER}, v{vLA}, v{vLD}
    v_mul_f32 v{PH}, v{vAI}, v{vLD}
    v_mul_f32 v{ER}, {LOG2E ^ 0x80000000:#x}, v{ER}
    v_mul_f32 v{PH}, {INV2PI:#x}, v{PH}
    v_add_f32 v{vLD}, v{vLD}, v{vLD}
    v_mul_f32 v{R0}, v{vCR}, v{vLD}
    v_mul_f32 v{R0+1}, v{vCI}, v{vLD}
    """)
    stamp(a, 2)
    W1, W2, W4, W8, WK = 40, 42, 44, 46, 48
    cexp(a, W8, W8+1, ER, PH, fhex(8.0), T0, T1)
    cexp(a, WK, WK+1, ER, PH, fhex(128.0), T0, T1)
    cexp(a, W1, W1+1, ER, PH, '1.0', T0, T1)
    pk_cmul(a, W2, W1, W1)
    pk_cmul(a, W4, W2, W2)
    PK = [56, 57, 58, 59]; pkc = [0]
    pend = []
    def put(row, s_, neg=False):
        pend.append((row, s_, neg))
    def flush(keep=0):
        while len(pend) > keep:
            row, s_, neg = pend.pop(0)
            p = PK[pkc[0] % 4]; pkc[0] += 1
            a(f"v_cvt_pk_bf16_f32 v{p}, v{s_}, {'-' if neg else ''}v{s_+1}")
            a(f"ds_write_b32 v{WA + (row & 7)}, v{p} offset:{row*512}")
    FR = [60, 62]; SR = [64, 66]
    a(f"v_mov_b32 v{PK[0]}, 0x3f80"); pkc[0] = 1
    a(f"ds_write_b32 v{WA + (F_ROW0 & 7)}, v{PK[0]} offset:{F_ROW0*512}")
    put(F_ROW0+1, W8, True); flush()
    fst = {'f': 1, 'cur': W8, 'n': 0}
    def fstep():
        if fst['f'] >= 15: return
        d = FR[fst['n'] & 1]; fst['n'] += 1
        pk_cmul(a, d, fst['cur'], W8)
        fst['f'] += 1; fst['cur'] = d
        put(F_ROW0+fst['f'], d, True); flush()
    Rc, Rn = R0, R1
    gather(0)
    for a_ in range(16):
        if a_ == 1: gather(1)
        if a_ == 3: gather(2)
        if a_ == 8: gather(3)
        if a_ > 0:
            pk_cmul(a, Rn, Rc, WK); Rc, Rn = Rn, Rc
        put(g_row_index(a_, 0), Rc); flush()
        if a_ < 2:   cs, w = list(range(1, 8)), W1
        elif a_ < 4: cs, w = [2, 4, 6, 8], W2
        elif a_ < 8: cs, w = [4, 8], W4
        else:        cs, w = [8], W8
        p = Rc
        for n_, c in enumerate(cs):
            sn = SR[n_ & 1]
            pk_cmul(a, sn, p, w)
            put(g_row_index(a_, c), sn); flush()
            p = sn
        fstep()
    while fst['f'] < 15: fstep()
    RA = 40
    a(f"""
    v_and_b32 v2, 15, v1                      ; row16 / f / i / r
    v_lshrrev_b32 v3, 4, v1
    v_and_b32 v4, 7, v2
    v_lshlrev_b32 v4, 1, v4
    v_xor_b32 v4, v4, v3
    v_lshlrev_b32 v4, 4, v4
    v_lshl_add_u32 v4, v2, 9, v4
    v_add_u32 v4, s45, v4
    s_lshl_b32 s46, s{PAR}, 8                 ; 4*half*64
    v_xor_b32 v4, s46, v4
    """)
    for s_ in range(4):
        a(f"v_xor_b32 v{RA+s_}, {s_*64}, v4")
    DD = 44
    FF, GG = 64, 80
    a("s_waitcnt lgkmcnt(0)")
    stamp(a, 3)
    for s_ in range(4):
        a(f"ds_read_b128 v[{FF+4*s_}:{FF+4*s_+3}], v{RA+s_} offset:{F_ROW0*512}")
        for T in range(4):
            g = GG + 16*s_ + 4*T
            a(f"ds_read_b128 v[{g}:{g+3}], v{RA+s_} offset:{T*8192}")
    for r in range(16): a(f"v_mov_b32 v{DD+r}, 0")
    XB = 147456
    a(f"""
    s_lshl_b32 s46, s{W}, 11
    s_add_u32 s46, s46, {XB}
    v_lshlrev_b32 v4, 4, v1
    v_add_u32 v5, s46, v4
    s_xor_b32 s46, s46, 2048
    v_add_u32 v4, s46, v4
    """)
    for s_ in range(4):
        a(f"s_waitcnt lgkmcnt({min(15, 5*(3-s_))})")
        for T in range(4):
            g = GG + 16*s_ + 4*T
            a(f"v_mfma_f32_16x16x32_bf16 v[{DD+4*T}:{DD+4*T+3}], v[{g}:{g+3}], v[{FF+4*s_}:{FF+4*s_+3}], v[{DD+4*T}:{DD+4*T+3}]")
    D0_, D1_ = 56, 60
    P = 64
    a(f"""
    s_mul_i32 s47, s{CH}, {KC_CH}
    s_add_u32 s47, s47, {KC_BASE}
    s_mov_b32 s48, 0x05040100
    s_mov_b32 s49, 0x07060302
    s_cmp_eq_u32 s{PAR}, 0
    s_cbranch_scc0 L_B_kx1
    ds_write_b128 v5, v[{DD+8}:{DD+11}]
    ds_write_b128 v5, v[{DD+12}:{DD+15}] offset:1024
    s_waitcnt lgkmcnt(0)
    s_barrier
    ds_read_b128 v[{D0_}:{D0_+3}], v4
    ds_read_b128 v[{D1_}:{D1_+3}], v4 offset:1024
    s_waitcnt lgkmcnt(0)
    """)
    for e in range(8): a(f"v_add_f32 v{D0_+e}, v{D0_+e}, v{DD+e}")
    a(f"""
    s_branch L_B_kxdone
    L_B_kx1:
    ds_write_b128 v5, v[{DD}:{DD+3}]
    ds_write_b128 v5, v[{DD+4}:{DD+7}] offset:1024
    s_waitcnt lgkmcnt(0)
    s_barrier
    ds_read_b128 v[64:67], v4
    ds_read_b128 v[68:71], v4 offset:1024
    s_waitcnt lgkmcnt(0)
    """)
    for e in range(7, -1, -1): a(f"v_add_f32 v{D0_+e}, v{DD+8+e}, v{64+e}")
    a.label("L_B_kxdone")
    stamp(a, 4)
    a(f"""
    s_cmp_eq_u32 s{PAR}, 0
    s_cbranch_scc0 L_B_half1
    v_lshrrev_b32 v4, 1, v3
    v_lshlrev_b32 v4, 8, v4                   ; 256*(rg>>1)
    v_lshl_add_u32 v4, v2, 4, v4              ; +16 f
    v_and_b32 v5, 1, v3
    v_lshl_add_u32 v4, v5, 3, v4              ; +8*(rg&1)
    v_sub_u32 v4, {2044*2}, v4
    v_add_u32 v4, s47, v4
    v_cvt_pk_bf16_f32 v{P}, v{D0_+3}, v{D0_+2}
    v_cvt_pk_bf16_f32 v{P+1}, v{D0_+1}, v{D0_}
    ds_write_b64 v4, v[{P}:{P+1}]
    v_and_b32 v5, 1, v2
    v_cmp_eq_u32 vcc, 1, v5
    v_lshlrev_b32 v4, 9, v3                   ; 512 rg
    v_lshl_add_u32 v4, v2, 4, v4
    v_sub_u32 v4, {4080 - 16*16*8}, v4
    v_add_u32 v4, s47, v4
    v_cndmask_b32 v6, v{D1_}, v{D1_+1}, vcc
    v_cndmask_b32 v7, v{D1_+2}, v{D1_+3}, vcc
    v_cvt_pk_bf16_f32 v{P+4}, v{D1_+1}, v{D1_+1}
    v_cvt_pk_bf16_f32 v{P+5}, v{D1_+1}, v6
    v_cvt_pk_bf16_f32 v{P+6}, v{D1_}, v{D1_}
    v_mov_b32 v{P+7}, v{P+6}
    v_add_u32 v5, -256, v4
    ds_write_b128 v4, v[{P+4}:{P+7}]
    v_cvt_pk_bf16_f32 v{P+8}, v{D1_+3}, v{D1_+3}
    v_cvt_pk_bf16_f32 v{P+9}, v{D1_+3}, v7
    v_cvt_pk_bf16_f32 v{P+10}, v{D1_+2}, v{D1_+2}
    v_mov_b32 v{P+11}, v{P+10}
    ds_write_b128 v5, v[{P+8}:{P+11}]
    s_branch L_B_exp1done
    L_B_half1:
    v_lshlrev_b32 v4, 8, v3
    v_lshl_add_u32 v4, v2, 4, v4
    v_sub_u32 v5, {4080 - 16*16*4}, v4
    v_add_u32 v5, s47, v5
    v_cvt_pk_bf16_f32 v{P}, v{D0_+2}, v{D0_+2}
    v_cvt_pk_bf16_f32 v{P+1}, v{D0_+1}, v{D0_+1}
    v_cvt_pk_bf16_f32 v{P+2}, v{D0_+1}, v{D0_}
    v_cvt_pk_bf16_f32 v{P+3}, v{D0_}, v{D0_}
    ds_write_b128 v5, v[{P}:{P+3}]
    v_sub_u32 v5, {4080 - 16*16*2}, v4
    v_add_u32 v5, s47, v5
    v_cvt_pk_bf16_f32 v{P+4}, v{D0_+3}, v{D1_+3}
    v_cvt_pk_bf16_f32 v{P+5}, v{D1_+2}, v{D1_+2}
    v_cvt_pk_bf16_f32 v{P+6}, v{D1_+2}, v{D1_+1}
    v_cvt_pk_bf16_f32 v{P+7}, v{D1_}, v{D1_}
    v_mov_b32 v{P+8}, 0
    v_mov_b32 v{P+9}, 0
    v_mov_b32 v{P+10}, 0
    v_mov_b32 v{P+11}, 0
    v_lshlrev_b32 v6, 4, v1
    v_add_u32 v6, s47, v6
    s_mov_b32 exec_hi, 0
    ds_write_b128 v5, v[{P+4}:{P+7}]
    s_mov_b64 exec, 3
    ds_write_b128 v6, v[{P+8}:{P+11}] offset:4096
    s_mov_b64 exec, -1
    L_B_exp1done:
    """)
    a(f"""
    v_lshlrev_b32 v8, 3, v0
    v_add_u32 v8, {UT_BASE + 512}, v8
    s_cmp_lt_u32 s{W}, 2
    s_cbranch_scc0 L_B_nouz
    v_mov_b32 v{P+12}, 0
    v_mov_b32 v{P+13}, 0
    v_mov_b32 v{P+14}, 0
    v_mov_b32 v{P+15}, 0
    v_lshrrev_b32 v4, 5, v0                   ; ch = t>>5 (t<128)
    v_mul_u32_u24 v4, {UT_CH}, v4
    v_and_b32 v5, 31, v0
    v_lshl_add_u32 v4, v5, 4, v4
    v_add_u32 v4, {UT_BASE}, v4
    ds_write_b128 v4, v[{P+12}:{P+15}]
    L_B_nouz:
    s_waitcnt vmcnt(0)
    """)
    for ch in range(4):
        dw = ch >> 1; sel = 48 + (ch & 1)
        q = P + 16 + 2*ch
        a(f"v_perm_b32 v{q}, v{U+2+dw}, v{U+dw}, s{sel}")
        a(f"v_perm_b32 v{q+1}, v{U+6+dw}, v{U+4+dw}, s{sel}")
        a(f"ds_write_b64 v8, v[{q}:{q+1}] offset:{ch*UT_CH}")
    vU, vA, vS2 = 9, 10, 11
    a(f"""
    s_mul_i32 s50, s{CH}, {UT_CH}
    s_lshl_b32 s51, s{PAR}, 6
    s_sub_u32 s50, s50, s51
    s_add_u32 s50, s50, {UT_BASE + 512 - 64*6 - 32}
    v_lshlrev_b32 v4, 5, v2
    v_lshl_add_u32 v4, v3, 4, v4
    v_add_u32 v{vU}, s50, v4
    v_add_u32 v5, 1, v2
    v_and_b32 v6, 3, v5
    v_mul_u32_u24 v6, {KC_COPY}, v6
    v_lshrrev_b32 v5, 2, v5
    v_lshlrev_b32 v5, 3, v5
    v_sub_u32 v6, v6, v5
    v_lshl_add_u32 v6, v3, 4, v6
    s_sub_u32 s50, s47, s51
    s_add_u32 s50, s50, {2*2032 - 128*31}
    v_add_u32 v{vA}, s50, v6
    v_and_b32 v4, 127, v0
    v_lshlrev_b32 v4, 4, v4
    v_add_u32 v{vS2}, s47, v4
    v_add_u32 v12, -8, v{vS2}
    s_waitcnt lgkmcnt(0)
    s_barrier
    """)
    stamp(a, 5)
    def s2_read(b, off):
        a(f"ds_read_b64 v[{b}:{b+1}], v12 offset:{off}")
        a(f"ds_read_b128 v[{b+2}:{b+5}], v{vS2} offset:{off}")
    def s2_work(b, t, off):
        for j in range(-1, 3):
            a(f"v_alignbit_b32 v{t+1+j}, v{b+2+j}, v{b+1+j}, 16")
        a(f"ds_write_b128 v{vS2}, v[{t}:{t+3}] offset:{off + 3*KC_COPY}")
        for j in range(0, 4):
            a(f"v_alignbit_b32 v{t+4+j}, v{b+2+j}, v{b+1+j}, 16")
        a(f"ds_write_b128 v{vS2}, v[{t+4}:{t+7}] offset:{off + KC_COPY}")
        for j in range(4):
            a(f"v_mov_b32 v{t+8+j}, v{b+1+j}")
        a(f"ds_write_b128 v{vS2}, v[{t+8}:{t+11}] offset:{off + 2*KC_COPY}")
    s2_read(64, 0); s2_read(70, 2048)
    a(f"""
    v_and_b32 v5, 127, v0
    v_cmp_gt_u32 vcc, 2, v5
    s_and_saveexec_b64 s[52:53], vcc
    s_cbranch_execz L_B_nost3r
    """)
    s2_read(76, 4096)
    a("""
    L_B_nost3r:
    s_mov_b64 exec, s[52:53]
    s_waitcnt lgkmcnt(0)
    """)
    s2_work(64, 84, 0)
    s2_work(70, 96, 2048)
    a("""
    s_and_b64 exec, exec, vcc
    s_cbranch_execz L_B_nost3w
    """)
    s2_work(76, 108, 4096)
    a("""
    L_B_nost3w:
    s_mov_b64 exec, s[52:53]
    """)
    UF, ACC = 96, 224
    AF = [64, 68, 72, 76]
    for r in range(32): a(f"v_mov_b32 v{ACC+r}, 0")
    a("s_waitcnt lgkmcnt(0)")
    a("s_barrier")
    stamp(a, 6)
    def rd(tp):
        b = AF[tp & 3]; off = 128*(31-tp); u = 31 - tp
        a(f"ds_read_b64 v[{b}:{b+1}], v{vA} offset:{off}")
        a(f"ds_read_b64 v[{b+2}:{b+3}], v{vA} offset:{off+8}")
        a(f"ds_read_b128 v[{UF+4*u}:{UF+4*u+3}], v{vU} offset:{128*u}")
    def rdl(tp):
        b = AF[tp & 3]; off = 128*(31-tp); u = 31 - tp
        return [f"ds_read_b64 v[{b}:{b+1}], v{vA} offset:{off}",
                f"ds_read_b64 v[{b+2}:{b+3}], v{vA} offset:{off+8}",
                f"ds_read_b128 v[{UF+4*u}:{UF+4*u+3}], v{vU} offset:{128*u}"]
    rd(31); rd(30); rd(29)
    for tp in range(31, -1, -1):
        a(f"s_waitcnt lgkmcnt({min(6, 3*tp)})")
        b = AF[tp & 3]
        mf = []
        for tau in range(7, (tp >> 2) - 1, -1):
            u = 4*tau - tp + 3
            mf.append(f"v_mfma_f32_16x16x32_bf16 v[{ACC+4*tau}:{ACC+4*tau+3}], v[{b}:{b+3}], v[{UF+4*u}:{UF+4*u+3}], v[{ACC+4*tau}:{ACC+4*tau+3}]")
        nxt = rdl(tp-3) if tp - 3 >= 0 else []
        ins = {}
        for t, x in enumerate(nxt):
            ins.setdefault(min(len(mf), 1 + t*max(1, len(mf)//3)), []).append(x)
        weave(a, mf, ins)
    stamp(a, 7)
    UE = 64
    a(f"""
    s_mul_i32 s50, s{CH}, {UT_CH}
    s_lshl_b32 s51, s{PAR}, 11                ; 4par*256*2
    s_add_u32 s50, s50, s51
    s_add_u32 s50, s50, {UT_BASE + 512}
    v_lshlrev_b32 v6, 5, v2
    v_lshl_add_u32 v6, v3, 3, v6              ; (16 i + 4 rg)*2
    v_add_u32 v7, s50, v6
    """)
    for j in range(4):
        a(f"ds_read_b64 v[{UE+2*j}:{UE+2*j+1}], v7 offset:{512*j}")
    a(f"""
    s_lshl_b32 s50, s{W}, 12
    s_add_u32 s50, s50, {RED_BASE}
    v_lshlrev_b32 v4, 4, v1
    v_add_u32 v5, s50, v4
    s_xor_b32 s50, s{W}, 1
    s_lshl_b32 s50, s50, 12
    s_add_u32 s50, s50, {RED_BASE}
    v_add_u32 v4, s50, v4
    v_and_b32 v8, 1, v3
    v_lshlrev_b32 v8, 9, v8
    v_lshl_add_u32 v8, v2, 5, v8              ; + 32 i
    v_lshrrev_b32 v9, 1, v3
    v_lshl_add_u32 v8, v9, 4, v8              ; + 16 (rg>>1)
    s_lshl_b32 s50, s{D}, 12
    s_add_u32 s50, s50, s51
    s_add_u32 s50, s50, {WS_BT:#x}
    s_cmp_eq_u32 s{PAR}, 1
    s_cbranch_scc1 L_B_par1
    """)
    PR = 96
    def tail(keep, send):
        for j in range(4):
            a(f"ds_write_b128 v5, v[{send+4*j}:{send+4*j+3}] offset:{1024*j}")
        a("s_waitcnt lgkmcnt(4)")
        for j in range(4):
            a(f"v_lshlrev_b32 v{72+4*j}, 16, v{UE+2*j}")
            a(f"v_and_b32 v{73+4*j}, 0xffff0000, v{UE+2*j}")
            a(f"v_lshlrev_b32 v{74+4*j}, 16, v{UE+2*j+1}")
            a(f"v_and_b32 v{75+4*j}, 0xffff0000, v{UE+2*j+1}")
        for j in range(4):
            for e in range(4): a(f"v_fmac_f32 v{keep+4*j+e}, v{72+4*j+e}, v{13}")
        a("s_waitcnt lgkmcnt(0)")
        a("s_barrier")
        for j in range(4):
            a(f"ds_read_b128 v[{PR+4*j}:{PR+4*j+3}], v4 offset:{1024*j}")
        for j in range(4):
            a(f"s_waitcnt lgkmcnt({3-j})")
            for e in range(4): a(f"v_add_f32 v{keep+4*j+e}, v{keep+4*j+e}, v{PR+4*j+e}")
            a(f"v_cvt_pk_bf16_f32 v{112+2*j}, v{keep+4*j}, v{keep+4*j+1}")
            a(f"v_cvt_pk_bf16_f32 v{113+2*j}, v{keep+4*j+2}, v{keep+4*j+3}")
        for jp in range(2):
            x0, x1, y0, y1 = 112+4*jp, 113+4*jp, 114+4*jp, 115+4*jp
            a(f"v_permlane16_swap_b32 v{x0}, v{y0}")
            a(f"v_permlane16_swap_b32 v{x1}, v{y1}")
            a(f"buffer_store_dwordx4 v[{x0}:{y1}], v8, s[16:19], s50 offen offset:{1024*jp} {SC}")
    tail(ACC, ACC+16)
    a("s_branch L_B_fin")
    a.label("L_B_par1")
    tail(ACC+16, ACC)
    a.label("L_B_fin")
    stamp(a, 8)
    stamp_flush(a, 0, 9)
    a("s_endpgm")
```

```python
from common import *

SLOT = 32768
RED = 4*SLOT

def phase2(SC="", exp=""):
    a = Asm()
    vm = VM(a)
    a("""
    s_cmp_ge_u32 s2, 256
    s_cbranch_scc1 L_P2_end
    """)
    stamp(a, 0)
    a("""
    s_load_dwordx2 s[16:17], s[0:1], 152      ; ws
    s_load_dwordx4 s[28:31], s[0:1], 40
    s_load_dwordx2 s[8:9], s[0:1], 0          ; x
    s_load_dwordx2 s[20:21], s[0:1], 136      ; out
    s_load_dwordx2 s[24:25], s[0:1], 64       ; A_Dskip
    v_lshrrev_b32 v2, 6, v0
    v_and_b32 v1, 63, v0
    s_and_b32 s33, s2, 7                      ; j
    v_readfirstlane_b32 s32, v2               ; w
    s_lshr_b32 s34, s2, 3                     ; idx
    s_lshr_b32 s35, s34, 3                    ; idx>>3
    s_and_b32 s36, s34, 7                     ; dtile
    s_lshl_b32 s37, s33, 2
    s_add_u32 s37, s37, s35                   ; rt
    s_lshl_b32 s40, s35, 1
    s_add_u32 s40, s40, s36
    s_and_b32 s40, s40, 7                     ; rot
    s_lshl_b32 s41, s37, 6                    ; l0
    s_lshl_b32 s42, s36, 6                    ; d0
    """)
    W, ROT, L0, D0 = 32, 40, 41, 42
    WI, WJ, KH = 43, 44, 45
    vH, vC0, vC1, vTR, vCB = 4, 5, 6, 8, 9
    a(f"""
    s_and_b32 s{WI}, s{W}, 1
    s_bfe_u32 s{WJ}, s{W}, 0x10001
    s_lshr_b32 s{KH}, s{W}, 2
    v_lshrrev_b32 v26, 3, v1                  ; r8
    v_and_b32 v27, 7, v1                      ; sig
    v_lshlrev_b32 v{vH}, 4, v1
    s_and_b32 s46, s{W}, 3
    s_lshl_b32 s47, s46, 16
    s_lshl_b32 s48, s{KH}, 21
    s_add_u32 s47, s47, s48
    v_add_u32 v{vH}, s47, v{vH}
    ; C
    v_lshrrev_b32 v28, 1, v26
    v_xor_b32 v27, v27, v28
    v_xor_b32 v28, 4, v27
    v_lshlrev_b32 v26, 10, v26
    v_lshl_add_u32 v{vC0}, v27, 4, v26
    v_lshl_add_u32 v{vC1}, v28, 4, v26
    v_add_u32 v{vC1}, 0x2000, v{vC1}
    s_lshl_b32 s46, s46, 4
    s_add_u32 s46, s46, s{D0}
    s_lshl_b32 s46, s46, 10
    v_add_u32 v{vC0}, s46, v{vC0}
    v_add_u32 v{vC1}, s46, v{vC1}
    s_lshl_b32 s50, s{W}, 11                  ; w*2048
    s_lshl_b32 s48, s{L0}, 1                  ; l0*2
    s_lshl_b32 s49, s{L0}, 4                  ; rt*1024 = l0*16
    s_waitcnt lgkmcnt(0)
    """)
    srd(a, 16, WS_SIZE)
    a(f"""
    s_cmp_lt_u32 s{W}, 4
    s_cselect_b32 s12, s28, s30
    s_cselect_b32 s13, s29, s31
    """)
    srd(a, 12, 0x80000)
    def issue(i):
        slot = (i & 3)*SLOT
        a(f"s_add_u32 s51, s{ROT}, {i}")
        a("s_and_b32 s51, s51, 7")
        a("s_lshl_b32 s52, s51, 18")
        a("s_add_u32 s52, s52, s49")
        a("s_add_u32 s53, s52, 32768")
        a("s_lshl_b32 s51, s51, 7")
        a(f"s_add_u32 m0, s50, {slot}")
        vm.op(f'c{i}', f"buffer_load_dwordx4 v{vH}, s[16:19], s52 offen lds")
        a(f"s_add_u32 m0, s50, {slot+16384}")
        vm.op(f'c{i}', f"buffer_load_dwordx4 v{vC0}, s[12:15], s51 offen lds")
        a(f"s_add_u32 m0, s50, {slot+1024}")
        vm.op(f'c{i}', f"buffer_load_dwordx4 v{vH}, s[16:19], s53 offen lds")
        a(f"s_add_u32 m0, s50, {slot+16384+1024}")
        vm.op(f'c{i}', f"buffer_load_dwordx4 v{vC1}, s[12:15], s51 offen lds")
    issue(0)
    a("s_barrier")
    issue(1)
    stamp(a, 1)
    srd(a, 8, 0x200000)
    srd(a, 20, 0x400000)
    a(f"""
    v_and_b32 v26, 15, v1
    v_lshrrev_b32 v27, 2, v26                 ; r
    v_and_b32 v26, 3, v1                      ; c'
    v_lshrrev_b32 v28, 4, v1                  ; G
    v_and_b32 v29, 1, v28
    v_lshl_add_u32 v26, v29, 2, v26           ; q = 4(G&1)+c'
    v_and_b32 v29, 1, v26
    v_lshlrev_b32 v29, 2, v29
    v_lshrrev_b32 v26, 1, v26
    v_add_u32 v26, v26, v29                   ; lambda (0..7)
    v_lshrrev_b32 v28, 1, v28                 ; kg
    v_lshlrev_b32 v28, 10, v28                ; kg*1024
    v_and_b32 v29, 1, v26
    v_lshl_add_u32 v28, v29, 3, v28           ; + (lambda&1)*8
    v_lshrrev_b32 v29, 1, v26
    v_lshl_add_u32 v28, v29, 7, v28           ; + (lambda>>1)*128
    v_lshrrev_b32 v29, 2, v26                 ; b
    v_lshl_add_u32 v27, v29, 2, v27           ; 4b + r
    v_lshl_add_u32 v28, v27, 4, v28
    s_lshl_b32 s54, s{KH}, 13                 ; 8*kh*1024
    s_lshl_b32 s55, s{WI}, 9                  ; 4wi*128
    s_add_u32 s54, s54, s55
    v_add_u32 v{vTR}, s54, v28
    v_xor_b32 v7, 64, v{vTR}
    v_and_b32 v26, 31, v1                     ; n
    v_lshrrev_b32 v27, 5, v1                  ; kg
    v_bfe_u32 v28, v26, 1, 3
    v_xor_b32 v28, v28, v27
    v_lshlrev_b32 v28, 4, v28
    v_lshl_add_u32 v28, v26, 7, v28
    s_lshl_b32 s54, s{KH}, 13
    s_lshl_b32 s55, s{WJ}, 12
    s_add_u32 s54, s54, s55
    s_add_u32 s54, s54, 16384
    v_add_u32 v{vCB}, s54, v28
    """)
    for s_ in range(1, 4): a(f"v_xor_b32 v{vCB+s_}, {32*s_}, v{vCB}")
    ACC = 48
    for r in range(16): a(f"v_mov_b32 v{ACC+r}, 0")
    T0, T1, T2 = 26, 27, 28
    XE, BE, GE, DK = 72, 80, 84, 92
    vXo, vBo, vGo, vOo = 93, 94, 95, 15
    a(f"""
    v_lshrrev_b32 v{T0}, 5, v1                   ; hi
    v_and_b32 v{T1}, 31, v1                      ; n
    s_lshl_b32 s54, s{WI}, 5
    s_lshl_b32 s55, s{KH}, 3
    s_add_u32 s54, s54, s55
    v_lshl_add_u32 v{T0}, v{T0}, 4, s54          ; lrow
    s_lshl_b32 s55, s{WJ}, 5
    v_add_u32 v{T1}, s55, v{T1}                  ; dcol
    v_lshlrev_b32 v{T2}, 1, v{T1}
    v_lshl_add_u32 v{vXo}, v{T0}, 10, v{T2}
    v_lshlrev_b32 v{T2}, 1, v{T0}
    v_lshl_add_u32 v{vBo}, v{T1}, 12, v{T2}
    v_lshlrev_b32 v{vGo}, 2, v{T0}
    v_lshlrev_b32 v{T2}, 2, v{T1}
    v_lshl_add_u32 v{vOo}, v{T0}, 11, v{T2}
    v_add_u32 v14, s{D0}, v{T1}
    v_lshlrev_b32 v14, 1, v14
    """)
    def epi_loads():
        a(f"s_lshl_b32 s54, s{D0}, 12")
        a("s_add_u32 s54, s54, s48")
        a(f"s_add_u32 s54, s54, {WS_BT:#x}")
        vm.op('epi', f"buffer_load_dwordx4 v[{BE}:{BE+3}], v{vBo}, s[16:19], s54 offen")
        a(f"s_lshl_b32 s54, s{L0}, 2")
        a(f"s_add_u32 s54, s54, {WS_G:#x}")
        vm.op('epi', f"buffer_load_dwordx4 v[{GE}:{GE+3}], v{vGo}, s[16:19], s54 offen")
        vm.op('epi', f"buffer_load_dwordx4 v[{GE+4}:{GE+7}], v{vGo}, s[16:19], s54 offen offset:16")
        vm.op('epi', f"global_load_ushort v{DK}, v14, s[24:25]")
        a(f"s_lshl_b32 s54, s{L0}, 10")
        a(f"s_lshl_b32 s55, s{D0}, 1")
        a("s_add_u32 s54, s54, s55")
        for e in range(8):
            vm.op('epi', f"buffer_load_ushort v{XE+e}, v{vXo}, s[8:11], s54 offen")
            if e < 7: a("s_add_u32 s54, s54, 1024")
    TT, G2 = 160, 168
    def epi_pre(a):
        a(f"v_lshlrev_b32 v{DK}, 16, v{DK}")
        for e in range(8):
            q = e >> 1
            if e & 1: a(f"v_and_b32 v28, 0xffff0000, v{BE+q}")
            else:     a(f"v_lshlrev_b32 v28, 16, v{BE+q}")
            a(f"v_lshlrev_b32 v{XE+e}, 16, v{XE+e}")
            a(f"v_fma_f32 v{XE+e}, v{XE+e}, v{DK}, -v28")
            a(f"v_fma_f32 v{TT+e}, v{GE+e}, v{XE+e}, v28")
            a(f"v_add_f32 v{G2+e}, v{GE+e}, v{GE+e}")
    FS = [96, 128]
    def read_list(i):
        b = FS[i & 1]; off = (i & 1)*SLOT; L = []
        for s_ in range(4):
            o = off + s_*2048
            L.append(f"ds_read_b64_tr_b16 v[{b+4*s_}:{b+4*s_+1}], v{vTR} offset:{o}")
            L.append(f"ds_read_b64_tr_b16 v[{b+4*s_+2}:{b+4*s_+3}], v7 offset:{o}")
            L.append(f"ds_read_b128 v[{b+16+4*s_}:{b+16+4*s_+3}], v{vCB+s_} offset:{off}")
        return L
    def toggle():
        a(f"v_xor_b32 v{vTR}, 0x10000, v{vTR}")
        a("v_xor_b32 v7, 0x10000, v7")
        for r in range(4): a(f"v_xor_b32 v{vCB+r}, 0x10000, v{vCB+r}")
    vm.wait('c0')
    a("s_barrier")
    stamp(a, 2)
    issue(2)
    for x in read_list(0): a(x)
    stamp(a, 3)
    for i in range(8):
        if i == 0: stamp(a, 4)
        if i == 4: stamp(a, 5)
        b = FS[i & 1]
        if i < 7:
            vm.wait(f'c{i+1}')
            a("s_waitcnt lgkmcnt(0)")
            a("s_barrier")
            if (i+1) in (2, 4, 6): toggle()
            if i + 3 < 8: issue(i+3)
            if i == 3: epi_loads()
            rl = read_list(i+1)
        else:
            a("s_waitcnt lgkmcnt(0)")
            rl = []
        mf = [f"v_mfma_f32_32x32x16_bf16 v[{ACC}:{ACC+15}], v[{b+4*s_}:{b+4*s_+3}], v[{b+16+4*s_}:{b+16+4*s_+3}], v[{ACC}:{ACC+15}]" for s_ in range(4)]
        ins = {}
        for t, x in enumerate(rl):
            ins.setdefault(min(4, 1 + (t*3)//12), []).append(x)
        weave(a, mf, ins)
        if i == 6:
            vm.wait('epi')
            epi_pre(a)
    stamp(a, 6)
    a(f"""
    v_lshlrev_b32 v26, 4, v1
    s_lshl_b32 s54, s{W}, 11
    s_add_u32 s54, s54, {RED}
    v_add_u32 v27, s54, v26
    s_xor_b32 s54, s{W}, 4
    s_lshl_b32 s54, s54, 11
    s_add_u32 s54, s54, {RED}
    v_add_u32 v26, s54, v26
    s_lshl_b32 s54, s{L0}, 11
    s_lshl_b32 s55, s{D0}, 2
    s_add_u32 s54, s54, s55
    s_cmp_eq_u32 s{KH}, 1
    s_cbranch_scc1 L_P2_kh1
    """)
    def fin(keep, send):
        a(f"ds_write_b128 v27, v[{send}:{send+3}]")
        a(f"ds_write_b128 v27, v[{send+4}:{send+7}] offset:1024")
        for e in range(8): a(f"v_fmac_f32 v{TT+e}, v{G2+e}, v{keep+e}")
        a("s_waitcnt lgkmcnt(0)")
        a("s_barrier")
        a("ds_read_b128 v[96:99], v26")
        a("ds_read_b128 v[100:103], v26 offset:1024")
        for e in range(8):
            if e == 0: a("s_waitcnt lgkmcnt(1)")
            if e == 4: a("s_waitcnt lgkmcnt(0)")
            a(f"v_fmac_f32 v{TT+e}, v{G2+e}, v{96+e}")
            a(f"buffer_store_dword v{TT+e}, v{vOo}, s[20:23], s54 offen {SC}")
            if e < 7: a("s_add_u32 s54, s54, 2048")
    fin(ACC, ACC+8)
    a("s_branch L_P2_fin")
    a.label("L_P2_kh1")
    fin(ACC+8, ACC)
    a.label("L_P2_fin")
    stamp(a, 7)
    stamp_flush(a, 1, 8)
    a.label("L_P2_end")
    a("s_endpgm")
    return a.text()
```

```python
import sys
sys.path.insert(0, 'gen')
from common import *
import phase1a, phase1b
import importlib

NAME = "gated_mix__ssm_conv_s5__ssm_conv_s4d__prompt"
HEADER = open('cdna_kernels/' + NAME + '.s.ref').read().split('; Override launch geometry')[0]

EXP = ''
SC1 = ''
SC2 = ''
def phase1():
    a = Asm()
    a("""
    s_cmp_ge_u32 s2, 256
    s_cbranch_scc1 L_P1_end
    s_cmp_ge_u32 s2, 128
    s_cbranch_scc1 L_P1_A
    """)
    phase1b.gen_B(a, SC=SC1)
    a.label("L_P1_A")
    phase1a.gen_A(a, SC=SC1)
    a.label("L_P1_end")
    a("s_endpgm")
    return a.text()

def build(phases=(1, 2)):
    s = HEADER
    if 1 in phases: s += "; @launch kernel=phase1_kernel grid=(256,1,1) block=(512,1,1) lds=163840\n"
    if 2 in phases: s += "; @launch kernel=phase2_kernel grid=(256,1,1) block=(512,1,1) lds=163840\n"
    s += '.amdgcn_target "amdgcn-amd-amdhsa--gfx950"\n.text\n'
    if 1 in phases: s += kernel_head("phase1_kernel") + phase1()
    if 2 in phases:
        import phase2
        s += kernel_head("phase2_kernel") + phase2.phase2(SC=SC2, exp=EXP)
    s += '.section .rodata,"a"\n.p2align 6\n'
    if 1 in phases: s += kernel_desc("phase1_kernel", 256) + ".p2align 6\n"
    if 2 in phases: s += kernel_desc("phase2_kernel", 256)
    return s

if __name__ == "__main__":
    out = sys.argv[1] if len(sys.argv) > 1 else 'p1.s'
    ph = tuple(int(c) for c in sys.argv[2]) if len(sys.argv) > 2 else (1, 2)
    import common
    common.STAMPS = len(sys.argv) > 3 and sys.argv[3] in ('stamps','dbg')
    common.DBGSTAMPS = len(sys.argv) > 3 and sys.argv[3] == 'dbg'
    for x in sys.argv[4:]:
        if x.startswith('sc1='): SC1 = x[4:].replace('_', ' ')
        elif x.startswith('sc2='): SC2 = x[4:].replace('_', ' ')
        else: EXP = x
    open(out, 'w').write(build(ph))
    print("wrote", out)
```

```python
import hazard
LOG2E = 0x3fb8aa3b
INV2PI = 0x3e22f983

WS_HT  = 0
WS_BT  = 4 << 20
WS_E   = 6 << 20
WS_G   = WS_E + 131072
WS_FLAG = WS_G + 8192
WS_STAMP = (6 << 20) + (512 << 10)
WS_SIZE = 7 << 20
STAMPS = False
DBGSTAMPS = False

class Asm:
    def __init__(self):
        self.lines = []
    def __call__(self, s):
        for l in s.strip('\n').split('\n'):
            l = l.strip()
            if not l: continue
            if l.endswith(':') and ' ' not in l: self.lines.append(l)
            else: self.lines.append('    ' + l)
    def label(self, n): self.lines.append(n + ':')
    def c(self, s): self.lines.append('    ; ' + s)
    def text(self, fix=True):
        L = hazard.fix(self.lines) if fix else self.lines
        return '\n'.join(L) + '\n'

def vr(b, n=1):
    return f"v{b}" if n == 1 else f"v[{b}:{b+n-1}]"
def sr(b, n=1):
    return f"s{b}" if n == 1 else f"s[{b}:{b+n-1}]"

def srd(a, base, size, ptr=None):
    if ptr is not None and ptr != base:
        a(f"s_mov_b32 s{base}, s{ptr}")
        a(f"s_mov_b32 s{base+1}, s{ptr+1}")
    a(f"s_mov_b32 s{base+2}, {size:#x}")
    a(f"s_mov_b32 s{base+3}, 0x20000")

def cmul(a, dr, di, ar, ai, br, bi, t0, t1):
    a(f"v_mul_f32 v{t0}, v{ai}, v{bi}")
    a(f"v_mul_f32 v{t1}, v{ai}, v{br}")
    if dr not in (ar, bi):
        a(f"v_fma_f32 v{dr}, v{ar}, v{br}, -v{t0}")
        a(f"v_fma_f32 v{di}, v{ar}, v{bi}, v{t1}")
    else:
        assert di not in (ar, br), (dr, di, ar, ai, br, bi)
        a(f"v_fma_f32 v{di}, v{ar}, v{bi}, v{t1}")
        a(f"v_fma_f32 v{dr}, v{ar}, v{br}, -v{t0}")

def csq(a, dr, di, ar, ai, t0):
    a(f"v_mul_f32 v{t0}, v{ai}, v{ai}")
    if di == ai:
        a(f"v_mul_f32 v{di}, v{ar}, v{ai}")
        a(f"v_add_f32 v{di}, v{di}, v{di}")
    else:
        a(f"v_add_f32 v{di}, v{ai}, v{ai}")
        a(f"v_mul_f32 v{di}, v{ar}, v{di}")
    a(f"v_fma_f32 v{dr}, v{ar}, v{ar}, -v{t0}")

def rbf(a, d, s):
    a(f"v_cvt_pk_bf16_f32 v{d}, v{s}, v{s}")
    a(f"v_and_b32 v{d}, 0xffff0000, v{d}")

def cexp(a, dr, di, er, ph, m, t0, t1):
    if m == '1.0':
        a(f"v_exp_f32 v{t0}, v{er}")
        a(f"v_fract_f32 v{t1}, v{ph}")
    else:
        a(f"v_mul_f32 v{t0}, {m}, v{er}")
        a(f"v_mul_f32 v{t1}, {m}, v{ph}")
        a(f"v_exp_f32 v{t0}, v{t0}")
        a(f"v_fract_f32 v{t1}, v{t1}")
    a(f"v_cos_f32 v{dr}, v{t1}")
    a(f"v_sin_f32 v{di}, v{t1}")
    a(f"v_mul_f32 v{dr}, v{dr}, v{t0}")
    a(f"v_mul_f32 v{di}, v{di}, v{t0}")

def fhex(x):
    import struct
    return "0x%08x" % struct.unpack("<I", struct.pack("<f", x))[0]

def kernel_head(name):
    return f""".globl {name}
.p2align 8
.type {name},@function
{name}:
"""
def kernel_desc(name, nv, acc=None, ns=102):
    acc = acc or nv
    return f""".amdhsa_kernel {name}
  .amdhsa_next_free_vgpr {nv}
  .amdhsa_next_free_sgpr {ns}
  .amdhsa_accum_offset {acc}
  .amdhsa_group_segment_fixed_size 0
  .amdhsa_kernarg_size 160
  .amdhsa_user_sgpr_count 2
  .amdhsa_user_sgpr_kernarg_segment_ptr 1
  .amdhsa_system_sgpr_workgroup_id_x 1
  .amdhsa_float_denorm_mode_32 3
.end_amdhsa_kernel
"""

def stamp(a, k):
    import common
    if common.STAMPS:
        a(f"s_memrealtime s[{74+2*k}:{75+2*k}]")
        if k == 0: a("s_memtime s[72:73]")

def stamp_flush(a, phase, n, wsrd=16, wavereg=32):
    import common
    if not common.STAMPS: return
    a("s_waitcnt vmcnt(0)")
    stamp(a, n)
    a("s_memtime s[56:57]")
    a("s_getreg_b32 s58, hwreg(HW_REG_XCC_ID)")
    a("s_waitcnt lgkmcnt(0)")
    a("s_sub_u32 s56, s56, s72")
    a(f"s_lshl_b32 s59, s2, 3")
    a(f"s_add_u32 s59, s59, s{wavereg}")
    a(f"s_lshl_b32 s59, s59, 7")
    a(f"s_add_u32 s59, s59, {WS_STAMP + phase*262144:#x}")
    a("v_mov_b32 v3, 0")
    a("s_mov_b64 exec, 1")
    for k in range(n+1):
        a(f"v_mov_b32 v4, s{74+2*k}")
        a(f"v_mov_b32 v5, s{75+2*k}")
        a(f"buffer_store_dwordx2 v[4:5], v3, s[{wsrd}:{wsrd+3}], s59 offen offset:{8*k}")
        a("s_nop 1")
    a("v_mov_b32 v4, s56")
    a("v_mov_b32 v5, s58")
    a(f"buffer_store_dwordx2 v[4:5], v3, s[{wsrd}:{wsrd+3}], s59 offen offset:120")
    a("s_waitcnt vmcnt(0)")

class VM:
    def __init__(self, a): self.a = a; self.ops = []
    def op(self, tag, text):
        self.a(text); self.ops.append(tag)
    def wait(self, *tags):
        idx = [i for i, t in enumerate(self.ops) if t in tags]
        if not idx: return
        last = max(idx)
        n = len(self.ops) - 1 - last
        assert n <= 63
        self.a(f"s_waitcnt vmcnt({n})")

def P(r): return f"v[{r}:{r+1}]"
def pk_cmul(a, d, s, w):
    assert d % 2 == 0 and s % 2 == 0 and w % 2 == 0 and d != s
    a(f"v_pk_mul_f32 {P(d)}, {P(s)}, {P(w)} op_sel:[1,1] op_sel_hi:[1,0] neg_lo:[0,1]")
    a(f"v_pk_fma_f32 {P(d)}, {P(s)}, {P(w)}, {P(d)} op_sel_hi:[0,1,1]")
def pk_cmac(a, d, s, w):
    assert d % 2 == 0 and s % 2 == 0 and w % 2 == 0 and d != s
    a(f"v_pk_fma_f32 {P(d)}, {P(s)}, {P(w)}, {P(d)} op_sel:[1,1,0] op_sel_hi:[1,0,1] neg_lo:[0,1,0]")
    a(f"v_pk_fma_f32 {P(d)}, {P(s)}, {P(w)}, {P(d)} op_sel_hi:[0,1,1]")

class Buf(Asm):
    def items(self): return [l.strip() for l in self.lines]

def weave(a, main, inserts):
    for i in range(len(main)+1):
        for x in inserts.get(i, []): a(x)
        if i < len(main): a(main[i])
```

```python
from common import *

XCH = 131072
ZTAB = XCH + 8192
NONCE = ZTAB + 512
PART = XCH + 12288

def gen_A(a, SC="", exp="", fused=False):
    vm = VM(a)
    stamp(a, 0)
    a("""
    s_load_dwordx4 s[20:23], s[0:1], 8
    s_load_dwordx2 s[24:25], s[0:1], 56       ; A_log_dt
    s_load_dwordx2 s[8:9], s[0:1], 0          ; x
    s_load_dwordx4 s[28:31], s[0:1], 24
    s_load_dwordx2 s[26:27], s[0:1], 128      ; gate_w
    s_load_dwordx4 s[64:67], s[0:1], 144
    s_memrealtime s[68:69]
    v_lshrrev_b32 v2, 6, v0
    v_and_b32 v1, 63, v0
    s_and_b32 s33, s2, 7
    v_readfirstlane_b32 s32, v2
    s_lshr_b32 s34, s2, 3
    s_sub_u32 s34, s34, 16                    ; i
    s_lshr_b32 s35, s34, 2                    ; i>>2
    s_and_b32 s36, s34, 3                     ; i&3
    s_lshr_b32 s37, s33, 1
    s_lshl_b32 s37, s37, 2
    s_add_u32 s37, s37, s35                   ; chunk c
    s_and_b32 s38, s33, 1
    s_lshl_b32 s38, s38, 2
    s_add_u32 s38, s38, s36                   ; slice s
    s_add_u32 s39, s35, s36
    s_and_b32 s39, s39, 3
    s_lshl_b32 s39, s39, 1
    """)
    C, S, ROT, W = 37, 38, 39, 32
    vXo0, vXo1, vBo0, vBo1 = 4, 5, 6, 7
    a("""
    v_lshrrev_b32 v8, 3, v1                   ; r8
    v_and_b32 v9, 7, v1                       ; sig
    v_lshrrev_b32 v10, 1, v8                  ; r8>>1
    v_xor_b32 v11, v9, v10
    v_xor_b32 v12, 4, v11
    v_lshlrev_b32 v13, 10, v8                 ; r8*1024
    v_lshl_add_u32 v4, v11, 4, v13
    v_lshl_add_u32 v5, v12, 4, v13
    v_add_u32 v5, 0x2000, v5                  ; +8 rows
    """)
    a(f"""
    s_lshl_b32 s40, s{C}, 17
    s_lshl_b32 s41, s{W}, 14
    s_add_u32 s40, s40, s41
    s_and_b32 s42, s{W}, 3
    s_lshl_b32 s42, s42, 14
    s_lshl_b32 s43, s{S}, 16
    s_add_u32 s42, s42, s43
    v_add_u32 v6, s42, v4
    v_add_u32 v7, s42, v5
    v_add_u32 v4, s40, v4
    v_add_u32 v5, s40, v5
    """)
    vP = 14
    a(f"""
    s_and_b32 s44, s{W}, 1                    ; ws
    s_lshr_b32 s45, s{W}, 1                   ; wr
    s_lshl_b32 s46, s{S}, 6
    s_lshl_b32 s47, s44, 5
    s_add_u32 s46, s46, s47
    v_and_b32 v{vP}, 31, v1
    v_add_u32 v{vP}, s46, v{vP}               ; p
    v_lshlrev_b32 v15, 1, v{vP}
    s_lshl_b32 s48, s{C}, 7
    s_lshl_b32 s49, s{S}, 4
    s_add_u32 s48, s48, s49
    s_lshl_b32 s49, s{W}, 1
    s_add_u32 s48, s48, s49
    s_lshl_b32 s49, s48, 10
    v_lshlrev_b32 v3, 4, v1
    s_lshl_b32 s50, s{W}, 11
    """)
    WS_, WR = 44, 45
    a("s_waitcnt lgkmcnt(0)")
    srd(a, 8, 0x200000)
    a(f"""
    s_cmp_lt_u32 s{W}, 4
    s_cselect_b32 s12, s28, s30
    s_cselect_b32 s13, s29, s31
    """)
    srd(a, 12, 0x80000)
    srd(a, 16, WS_SIZE, ptr=66)
    def issue(i):
        slot = i & 3
        a(f"s_add_u32 s51, s{ROT}, {i}")
        a("s_and_b32 s51, s51, 7")
        a("s_lshl_b32 s51, s51, 7")
        base = slot*32768
        for (off, vo, sr_) in ((0, vXo0, 8), (16384, vBo0, 12), (1024, vXo1, 8), (16384+1024, vBo1, 12)):
            a(f"s_add_u32 m0, s50, {base+off}")
            vm.op(f"c{i}", f"buffer_load_dwordx4 v{vo}, s[{sr_}:{sr_+3}], s51 offen lds")
    vLre, vLim, vLdt = 16, 17, 18
    vGX0, vGX1, vGW = 20, 24, 28
    vm.op('par', f"global_load_ushort v{vLdt}, v15, s[24:25]")
    vm.op('par', f"global_load_ushort v{vLre}, v15, s[20:21]")
    vm.op('par', f"global_load_ushort v{vLim}, v15, s[22:23]")
    issue(0)
    a("s_barrier")
    issue(1)
    a(f"""
    s_cmp_eq_u32 s2, 128
    s_cbranch_scc0 L_A_nonw
    s_cmp_eq_u32 s{W}, 0
    s_cbranch_scc0 L_A_nonw
    s_or_b32 s70, s68, 1
    v_mov_b32 v32, s70
    v_lshlrev_b32 v33, 6, v1
    s_mov_b64 exec, 15
    global_store_dword v33, v32, s[64:65] sc1
    s_mov_b64 exec, -1
    L_A_nonw:
    """)
    stamp(a, 1)
    a(f"""
    v_mov_b32 v32, 0
    v_mov_b32 v33, 0
    v_lshlrev_b32 v34, 3, v0
    v_add_u32 v34, {XCH}, v34
    s_cmp_lt_u32 s{W}, 7
    s_cbranch_scc0 L_A_nozero
    ds_write_b64 v34, v[32:33]
    L_A_nozero:
    """)
    vXA, vBA = 36, 40
    a(f"""
    v_and_b32 v8, 31, v1                      ; m
    v_lshrrev_b32 v9, 5, v1                   ; kg
    v_bfe_u32 v10, v8, 2, 1
    v_lshlrev_b32 v10, 4, v10                 ; 16*hi
    v_lshrrev_b32 v11, 3, v8
    v_lshl_add_u32 v10, v11, 1, v10           ; +2*j
    v_and_b32 v11, 1, v8
    v_lshl_add_u32 v10, v11, 3, v10           ; +8*(r&1)
    v_bfe_u32 v11, v8, 1, 1
    v_add_u32 v10, v10, v11                   ; +(r>>1)  -> t(m)
    v_bfe_u32 v11, v10, 1, 3                  ; key
    v_xor_b32 v11, v11, v9
    v_lshlrev_b32 v11, 4, v11
    s_lshl_b32 s54, s{WR}, 12                 ; 32*wr*128
    v_lshl_add_u32 v11, v10, 7, v11
    v_add_u32 v{vXA}, s54, v11
    v_bfe_u32 v11, v8, 1, 3
    v_xor_b32 v11, v11, v9
    v_lshlrev_b32 v11, 4, v11
    v_lshl_add_u32 v11, v8, 7, v11
    s_lshl_b32 s54, s{WS_}, 12
    s_add_u32 s54, s54, 16384
    v_add_u32 v{vBA}, s54, v11
    """)
    for st in range(1, 4):
        a(f"v_xor_b32 v{vXA+st}, {32*st}, v{vXA}")
        a(f"v_xor_b32 v{vBA+st}, {32*st}, v{vBA}")
    ACR, ACI = 64, 80
    for r in range(32): a(f"v_mov_b32 v{ACR+r}, 0")
    vm.wait('par')
    vEr, vPh, vLr, vLi, vCr, vCi, vL16r, vL16i, vNLi, vNCi = 44, 45, 46, 47, 48, 49, 50, 51, 58, 59
    T0, T1, T2, T3 = 52, 53, 54, 55
    a(f"""
    v_lshlrev_b32 v{vLdt}, 16, v{vLdt}
    v_lshlrev_b32 v{vLre}, 16, v{vLre}
    v_lshlrev_b32 v{vLim}, 16, v{vLim}
    v_mul_f32 v{T0}, {LOG2E:#x}, v{vLdt}
    v_exp_f32 v{T0}, v{T0}
    """)
    rbf(a, T0, T0)
    a(f"""
    v_mul_f32 v{vEr}, v{T0}, v{vLre}
    v_mul_f32 v{vPh}, v{T0}, v{vLim}
    v_mul_f32 v{vEr}, {LOG2E:#x}, v{vEr}
    v_mul_f32 v{vPh}, {INV2PI:#x}, v{vPh}
    """)
    cexp(a, vLr, vLi, vEr, vPh, '1.0', T0, T1)
    a(f"""
    v_add_f32 v{T0}, -1.0, v{vLr}
    v_mul_f32 v{T1}, v{vLre}, v{vLre}
    v_fmac_f32 v{T1}, v{vLim}, v{vLim}
    v_rcp_f32 v{T1}, v{T1}
    v_mul_f32 v{T2}, v{T0}, v{vLre}
    v_fmac_f32 v{T2}, v{vLi}, v{vLim}
    v_mul_f32 v{T3}, v{T0}, v{vLim}
    v_fma_f32 v{T3}, v{vLi}, v{vLre}, -v{T3}
    v_mul_f32 v{vCr}, v{T2}, v{T1}
    v_mul_f32 v{vCi}, v{T3}, v{T1}
    v_xor_b32 v{vNLi}, 0x80000000, v{vLi}
    v_xor_b32 v{vNCi}, 0x80000000, v{vCi}
    """)
    cexp(a, vL16r, vL16i, vEr, vPh, fhex(16.0), T0, T1)
    vL8 = 32
    cexp(a, vL8, vL8+1, vEr, vPh, fhex(8.0), T0, T1)
    vLS = 60
    a(f"""
    v_lshrrev_b32 v8, 5, v1                   ; hi
    s_lshl_b32 s54, s{WR}, 1
    v_add_u32 v8, s54, v8                     ; seg
    v_lshlrev_b32 v9, 4, v8
    v_cvt_f32_u32 v9, v9
    """)
    cexp(a, vLS, vLS+1, vEr, vPh, "v9", T0, T1)
    a(f"""
    s_cmp_eq_u32 s{WR}, 0
    s_cbranch_scc0 L_A_noz
    v_and_b32 v9, 31, v1
    s_lshl_b32 s54, s{WS_}, 5
    v_add_u32 v9, s54, v9
    v_lshlrev_b32 v9, 3, v9
    v_add_u32 v9, {ZTAB}, v9
    ds_write_b64 v9, v[{vEr}:{vPh}]
    L_A_noz:
    """)
    stamp(a, 2)
    FS = [96, 144]
    def fr(buf, st, kind): return FS[buf] + 12*st + 4*kind
    def read_list(i):
        off = (i & 1)*32768; buf = i & 1; L = []
        for st in range(4):
            L.append(f"ds_read_b128 v[{fr(buf,st,0)}:{fr(buf,st,0)+3}], v{vXA+st} offset:{off}")
            L.append(f"ds_read_b128 v[{fr(buf,st,1)}:{fr(buf,st,1)+3}], v{vBA+st} offset:{off}")
            L.append(f"ds_read_b128 v[{fr(buf,st,2)}:{fr(buf,st,2)+3}], v{vBA+st} offset:{off+8192}")
        return L
    def toggle():
        for r in range(4):
            a(f"v_xor_b32 v{vXA+r}, 0x10000, v{vXA+r}")
            a(f"v_xor_b32 v{vBA+r}, 0x10000, v{vBA+r}")
    vm.wait('c0')
    a("s_barrier")
    stamp(a, 3)
    issue(2)
    for x in read_list(0): a(x)
    for i in range(8):
        if i == 4: stamp(a, 4)
        buf = i & 1
        if i < 7:
            vm.wait(f'c{i+1}')
            a("s_waitcnt lgkmcnt(0)")
            a("s_barrier")
            if (i+1) in (2, 4, 6): toggle()
            if i == 2:
                a(f"""
                s_cmp_eq_u32 s{W}, 0
                s_cbranch_scc0 L_A_nonr
                s_bfe_u32 s54, s2, 0x20003
                s_lshl_b32 s54, s54, 6
                v_mov_b32 v34, s54
                global_load_dword v35, v34, s[64:65] sc1
                L_A_nonr:
                """)
            if i + 3 < 8: issue(i+3)
            if i == 5:
                vm.op('gate', f"global_load_dwordx4 v[{vGW}:{vGW+3}], v3, s[26:27]")
                vm.op('gate', f"buffer_load_dwordx4 v[{vGX0}:{vGX0+3}], v3, s[8:11], s49 offen")
                vm.op('gate', f"buffer_load_dwordx4 v[{vGX1}:{vGX1+3}], v3, s[8:11], s49 offen offset:1024")
            if i == 4:
                a(f"""
                s_cmp_eq_u32 s{W}, 0
                s_cbranch_scc0 L_A_nonc
                s_mov_b32 s55, 0x8000
                L_A_nonp:
                v_readfirstlane_b32 s70, v35
                s_cmp_lg_u32 s70, 0
                s_cbranch_scc1 L_A_nong
                global_load_dword v35, v34, s[64:65] sc1
                s_waitcnt vmcnt(0)
                s_sub_u32 s55, s55, 1
                s_cmp_lg_u32 s55, 0
                s_cbranch_scc1 L_A_nonp
                L_A_nong:
                v_mov_b32 v34, {NONCE}
                ds_write_b32 v34, v35
                L_A_nonc:
                """)
            rl = read_list(i+1)
        else:
            a("s_waitcnt lgkmcnt(0)")
            rl = []
        mf = []
        for st in range(4):
            A_, Br, Bi = fr(buf,st,0), fr(buf,st,1), fr(buf,st,2)
            mf.append(f"v_mfma_f32_32x32x16_bf16 v[{ACR}:{ACR+15}], v[{A_}:{A_+3}], v[{Br}:{Br+3}], v[{ACR}:{ACR+15}]")
            mf.append(f"v_mfma_f32_32x32x16_bf16 v[{ACI}:{ACI+15}], v[{A_}:{A_+3}], v[{Bi}:{Bi+3}], v[{ACI}:{ACI+15}]")
        ins = {}
        for t, x in enumerate(rl):
            ins.setdefault(min(8, 1 + (t*7)//12), []).append(x)
        weave(a, mf, ins)
    stamp(a, 5)
    vTag, vZ = 35, 62
    a(f"""
    v_mov_b32 v34, {NONCE}
    ds_read_b32 v{vTag}, v34
    v_lshlrev_b32 v34, 3, v1
    v_add_u32 v34, {ZTAB}, v34
    ds_read_b64 v[{vZ}:{vZ+1}], v34
    """)
    BC = lambda k, hi: (f"op_sel:[{k}]", )
    CF = vCr
    LM = vLr
    TP = 52
    for s_ in range(8):
        R, I = ACR+2*s_, ACI+2*s_
        a(f"v_pk_mul_f32 {P(TP)}, {P(R)}, {P(CF)} op_sel:[0,1] op_sel_hi:[1,1]")
        a(f"v_pk_mul_f32 {P(R)}, {P(R)}, {P(CF)} op_sel:[0,0] op_sel_hi:[1,0]")
        a(f"v_pk_fma_f32 {P(R)}, {P(I)}, {P(CF)}, {P(R)} op_sel:[0,1,0] op_sel_hi:[1,1,1] neg_lo:[0,1,0] neg_hi:[0,1,0]")
        a(f"v_pk_fma_f32 {P(I)}, {P(I)}, {P(CF)}, {P(TP)} op_sel:[0,0,0] op_sel_hi:[1,0,1]")
    ER, EI, U, V = 112, 114, 116, 118
    a(f"v_mov_b64 {P(ER)}, {P(ACR)}")
    a(f"v_mov_b64 {P(EI)}, {P(ACI)}")
    for s_ in range(1, 8):
        R, I = ACR+2*s_, ACI+2*s_
        a(f"v_pk_fma_f32 {P(U)}, {P(EI)}, {P(LM)}, {P(R)} op_sel:[0,1,0] op_sel_hi:[1,1,1] neg_lo:[0,1,0] neg_hi:[0,1,0]")
        a(f"v_pk_fma_f32 {P(V)}, {P(ER)}, {P(LM)}, {P(I)} op_sel:[0,1,0] op_sel_hi:[1,1,1]")
        a(f"v_pk_fma_f32 {P(ER)}, {P(ER)}, {P(LM)}, {P(U)} op_sel:[0,0,0] op_sel_hi:[1,0,1]")
        a(f"v_pk_fma_f32 {P(EI)}, {P(EI)}, {P(LM)}, {P(V)} op_sel:[0,0,0] op_sel_hi:[1,0,1]")
    eR, eI = 56, 57
    a(f"""
    v_fma_f32 v{eR}, v{vL8}, v{ER}, v{ER+1}
    v_fma_f32 v{eI}, v{vL8}, v{EI}, v{EI+1}
    v_fma_f32 v{eR}, -v{vL8+1}, v{EI}, v{eR}
    v_fma_f32 v{eI}, v{vL8+1}, v{ER}, v{eI}
    v_and_b32 v9, 31, v1
    s_lshl_b32 s54, s{WS_}, 5
    v_add_u32 v9, s54, v9
    v_lshlrev_b32 v10, 3, v9
    v_lshl_add_u32 v9, v8, 9, v10
    v_add_u32 v9, {XCH}, v9
    ds_write_b64 v9, v[{eR}:{eI}] offset:{7*512}
    s_waitcnt lgkmcnt(0)
    s_barrier
    """)
    EB = 96
    for i in range(7):
        a(f"ds_read_b64 v[{EB+2*i}:{EB+2*i+1}], v9 offset:{i*512}")
    cH = EB
    for i in range(1, 7):
        a(f"s_waitcnt lgkmcnt({6-i})")
        pk_cmac(a, EB+2*i, cH, vL16r)
        cH = EB+2*i
    a(f"""
    s_cmp_eq_u32 s{WR}, 3
    s_cbranch_scc0 L_A_noE
    """)
    pk_cmac(a, eR, cH, vL16r)
    a(f"""
    v_mov_b32 v136, v{eR}
    v_mov_b32 v137, v{vTag}
    v_mov_b32 v138, v{eI}
    v_mov_b32 v139, v{vTag}
    s_lshl_b32 s54, s{C}, 13
    s_add_u32 s54, s54, {WS_E:#x}
    v_lshlrev_b32 v140, 4, v{vP}
    s_mov_b32 exec_lo, 0
    buffer_store_dwordx4 v[136:139], v140, s[16:19], s54 offen sc1
    s_mov_b32 exec_lo, -1
    L_A_noE:
    """)
    stamp(a, 6)
    WA1, WA2 = 144, 146
    a(f"""
    s_sub_u32 s56, s{C}, 1
    s_sub_u32 s56, s56, s{W}
    s_sub_u32 s57, s56, 8                     ; m2
    s_max_i32 s58, s56, 0
    s_max_i32 s59, s57, 0
    s_lshl_b32 s58, s58, 7
    s_lshl_b32 s59, s59, 7
    v_cvt_f32_u32 v141, s58
    v_cvt_f32_u32 v142, s59
    """)
    cexp(a, WA1, WA1+1, vZ, vZ+1, "v141", T0, T1)
    cexp(a, WA2, WA2+1, vZ, vZ+1, "v142", T0, T1)
    GT0, GT1, GT2, GT3 = 124, 125, 126, 127
    vm.wait('gate')
    def gate_row(X, dst):
        for k in range(4):
            a(f"v_lshlrev_b32 v{GT0}, 16, v{X+k}")
            a(f"v_lshlrev_b32 v{GT1}, 16, v{vGW+k}")
            a(f"v_and_b32 v{GT2}, 0xffff0000, v{X+k}")
            a(f"v_and_b32 v{GT3}, 0xffff0000, v{vGW+k}")
            if k == 0: a(f"v_mul_f32 v{dst}, v{GT0}, v{GT1}")
            else: a(f"v_fmac_f32 v{dst}, v{GT0}, v{GT1}")
            a(f"v_fmac_f32 v{dst}, v{GT2}, v{GT3}")
    G0, G1 = 148, 149
    gate_row(vGX0, G0)
    gate_row(vGX1, G1)
    for n in (8, 4, 2, 1):
        a(f"v_add_f32_dpp v{G0}, v{G0}, v{G0} row_ror:{n} row_mask:0xf bank_mask:0xf")
        a(f"v_add_f32_dpp v{G1}, v{G1}, v{G1} row_ror:{n} row_mask:0xf bank_mask:0xf")
    a(f"""
    v_readlane_b32 s56, v{G0}, 0
    v_readlane_b32 s57, v{G0}, 16
    v_readlane_b32 s58, v{G0}, 32
    v_readlane_b32 s59, v{G0}, 48
    v_readlane_b32 s60, v{G1}, 0
    v_readlane_b32 s61, v{G1}, 16
    v_readlane_b32 s62, v{G1}, 32
    v_readlane_b32 s63, v{G1}, 48
    v_mov_b32 v{G0}, s56
    v_mov_b32 v{G1}, s60
    v_add_f32 v{G0}, s57, v{G0}
    v_add_f32 v{G1}, s61, v{G1}
    v_add_f32 v{G0}, s58, v{G0}
    v_add_f32 v{G1}, s62, v{G1}
    v_add_f32 v{G0}, s59, v{G0}
    v_add_f32 v{G1}, s63, v{G1}
    v_cmp_eq_u32 vcc, 1, v1
    v_cndmask_b32 v{G0}, v{G0}, v{G1}, vcc
    """)
    rbf(a, G0, G0)
    a(f"""
    v_mul_f32 v{G0}, {LOG2E:#x}, v{G0}
    v_exp_f32 v{G0}, -v{G0}
    v_add_f32 v{G0}, 1.0, v{G0}
    v_rcp_f32 v{G0}, v{G0}
    v_add_u32 v{G1}, s48, v1
    v_lshlrev_b32 v{G1}, 2, v{G1}
    v_add_u32 v{G1}, {WS_G:#x}, v{G1}
    """)
    rbf(a, G0, G0)
    a(f"""
    s_mov_b64 exec, 3
    buffer_store_dword v{G0}, v{G1}, s[16:19], 0 offen {SC}
    s_mov_b64 exec, -1
    """)
    E1, E2 = 124, 128
    PS = 132
    a(f"""
    v_mov_b32 v{PS}, 0
    v_mov_b32 v{PS+1}, 0
    s_lshl_b32 s56, s{S}, 10                  ; 64 s *16
    s_add_u32 s56, s56, {WS_E:#x}
    s_lshl_b32 s57, s{W}, 13
    s_add_u32 s56, s56, s57                   ; E[w][64s]
    s_add_u32 s57, s56, {8*8192}              ; E[w+8][64s]
    v_lshlrev_b32 v150, 4, v1
    v_readfirstlane_b32 s71, v{vTag}
    s_cmp_lt_u32 s{W}, s{C}
    s_cbranch_scc0 L_A_pdone
    s_add_u32 s58, s{W}, 8
    s_cmp_lt_u32 s58, s{C}
    s_cselect_b32 s57, s57, s56
    s_cselect_b32 s59, 1, 0
    s_mov_b32 s55, 0x8000
    L_A_poll:
    buffer_load_dwordx4 v[{E1}:{E1+3}], v150, s[16:19], s56 offen sc1
    buffer_load_dwordx4 v[{E2}:{E2+3}], v150, s[16:19], s57 offen sc1
    s_waitcnt vmcnt(0)
    v_cmp_ne_u32 vcc, s71, v{E1+1}
    v_cmp_ne_u32 s[60:61], s71, v{E1+3}
    s_or_b64 vcc, vcc, s[60:61]
    v_cmp_ne_u32 s[60:61], s71, v{E2+1}
    v_cmp_ne_u32 s[62:63], s71, v{E2+3}
    s_or_b64 vcc, vcc, s[60:61]
    s_or_b64 vcc, vcc, s[62:63]
    s_cbranch_vccz L_A_pok
    s_sub_u32 s55, s55, 1
    s_cmp_lg_u32 s55, 0
    s_cbranch_scc1 L_A_poll
    L_A_pok:
    v_mov_b32 v{E1+1}, v{E1+2}
    v_mov_b32 v{E2+1}, v{E2+2}
    """)
    pk_cmul(a, PS, E1, WA1)
    a("s_cmp_eq_u32 s59, 1")
    a("s_cbranch_scc0 L_A_pdone")
    pk_cmac(a, PS, E2, WA2)
    a(f"""
    L_A_pdone:
    s_lshl_b32 s54, s{W}, 9
    s_add_u32 s54, s54, {PART}
    v_lshlrev_b32 v150, 3, v1
    v_add_u32 v150, s54, v150
    ds_write_b64 v150, v[{PS}:{PS+1}]
    v_add_u32 v150, {PART}, v10
    v_lshrrev_b32 v8, 5, v1
    v_lshlrev_b32 v8, 8, v8                   ; hi*256
    v_lshrrev_b32 v9, 3, v{vP}
    v_lshl_add_u32 v8, v9, 15, v8             ; (p>>3)*32768
    v_and_b32 v9, 7, v{vP}
    v_lshrrev_b32 v11, 5, v1
    v_lshlrev_b32 v11, 2, v11
    v_xor_b32 v9, v9, v11                     ; (p&7) ^ (4 hi)
    v_lshl_add_u32 v8, v9, 4, v8
    s_lshl_b32 s54, s{C}, 11                  ; 16c*128
    s_lshl_b32 s55, s{WR}, 9                  ; 4wr*128
    s_add_u32 s54, s54, s55
    s_add_u32 s55, s54, 0x200000
    """)
    if fused:
        a("""
        s_load_dwordx4 s[28:31], s[0:1], 40
        s_load_dwordx2 s[8:9], s[0:1], 0
        s_load_dwordx2 s[20:21], s[0:1], 136
        s_load_dwordx2 s[24:25], s[0:1], 64
        """)
    a("""
    s_waitcnt lgkmcnt(0)
    s_barrier
    """)
    stamp(a, 7)
    PB = 152
    for w in range(8):
        a(f"ds_read_b64 v[{PB+2*w}:{PB+2*w+1}], v150 offset:{w*512}")
    for w in range(1, 8):
        a(f"s_waitcnt lgkmcnt({7-w})")
        a(f"v_pk_add_f32 {P(PB)}, {P(PB)}, {P(PB+2*w)}")
    pk_cmac(a, cH, PB, vLS)
    PR, PI = 120, 122
    a(f"""
    v_mov_b32 v{PR}, v{cH}
    v_mov_b32 v{PI}, v{cH+1}
    v_fma_f32 v{PR+1}, v{vL8}, v{cH}, v{ER}
    v_fma_f32 v{PI+1}, v{vL8}, v{cH+1}, v{EI}
    v_fma_f32 v{PR+1}, -v{vL8+1}, v{cH+1}, v{PR+1}
    v_fma_f32 v{PI+1}, v{vL8+1}, v{cH}, v{PI+1}
    """)
    pr, pi = PR, PI
    for s_ in range(8):
        R, I = ACR+2*s_, ACI+2*s_
        a(f"v_pk_fma_f32 {P(R)}, {P(pr)}, {P(LM)}, {P(R)} op_sel:[0,0,0] op_sel_hi:[1,0,1]")
        a(f"v_pk_fma_f32 {P(I)}, {P(pi)}, {P(LM)}, {P(I)} op_sel:[0,0,0] op_sel_hi:[1,0,1]")
        a(f"v_pk_fma_f32 {P(R)}, {P(pi)}, {P(LM)}, {P(R)} op_sel:[0,1,0] op_sel_hi:[1,1,1] neg_lo:[0,1,0] neg_hi:[0,1,0]")
        a(f"v_pk_fma_f32 {P(I)}, {P(pr)}, {P(LM)}, {P(I)} op_sel:[0,1,0] op_sel_hi:[1,1,1]")
        pr, pi = R, I
    PK = 124
    for q in range(2):
        for j_ in range(4):
            a(f"v_cvt_pk_bf16_f32 v{PK+4*q+j_}, v{ACR+4*j_+q}, v{ACR+4*j_+2+q}")
        a(f"buffer_store_dwordx4 v[{PK+4*q}:{PK+4*q+3}], v8, s[16:19], s54 offen offset:{128*q} {SC}")
        for j_ in range(4):
            a(f"v_cvt_pk_bf16_f32 v{PK+8+4*q+j_}, -v{ACI+4*j_+q}, -v{ACI+4*j_+2+q}")
        a(f"buffer_store_dwordx4 v[{PK+8+4*q}:{PK+8+4*q+3}], v8, s[16:19], s55 offen offset:{128*q} {SC}")
    stamp(a, 8)
    if fused:
        a(f"""
        s_mov_b32 s70, s71
        s_lshl_b32 s69, s{C}, 6
        s_lshl_b32 s68, s{S}, 2
        s_add_u32 s69, s69, s68
        s_add_u32 s69, s69, {WS_FLAG:#x}
        """)
        return
    stamp_flush(a, 0, 9)
    a("s_endpgm")
```

```python
from common import *

CH_TAB = 72*512
F_ROW0 = 56
KC_BASE = 64
KC_COPY = 4160
KC_CH = 4*KC_COPY
UT_BASE = KC_BASE + 4*KC_CH
UT_CH = 4608
RED_BASE = UT_BASE + 4*UT_CH

def g_row_index(a_, c):
    if a_ < 2:
        rg = 2*a_ + (c >> 2); e = c & 3
        return 0*16 + 4*rg + e
    if a_ >= 8:
        rg = (a_-8) >> 1; e = 2*((a_-8) & 1) + (1 if c == 8 else 0)
        return 1*16 + 4*rg + e
    if a_ >= 4:
        rg = a_-4; e = {0: 0, 4: 1, 8: 2}[c]
        return 2*16 + 4*rg + e
    rg = a_-2
    if c == 8: return 2*16 + 4*rg + 3
    return 3*16 + 4*rg + c//2

def cm(a, d, s, w):
    a(f"v_mul_f32 v{d[0]}, v{s[1]}, v{w[2]}")
    a(f"v_mul_f32 v{d[1]}, v{s[1]}, v{w[0]}")
    a(f"v_fmac_f32 v{d[0]}, v{s[0]}, v{w[0]}")
    a(f"v_fmac_f32 v{d[1]}, v{s[0]}, v{w[1]}")

def gen_B(a, SC="", fused=False):
    stamp(a, 0)
    a("""
    s_load_dwordx4 s[20:23], s[0:1], 80
    s_load_dwordx4 s[24:27], s[0:1], 96
    s_load_dwordx4 s[28:31], s[0:1], 112
    s_load_dwordx2 s[8:9], s[0:1], 0          ; x
    s_load_dwordx2 s[16:17], s[0:1], 152      ; ws
    s_load_dwordx2 s[64:65], s[0:1], 144      ; dbg
    v_lshrrev_b32 v2, 6, v0
    v_and_b32 v1, 63, v0
    s_and_b32 s33, s2, 7                      ; xcd j
    v_readfirstlane_b32 s32, v2               ; wave
    s_lshr_b32 s34, s2, 3                     ; i (0..15)
    s_lshl_b32 s35, s33, 6
    s_lshl_b32 s36, s34, 2
    s_add_u32 s35, s35, s36                   ; d0
    """)
    W, I, D0 = 32, 34, 35
    a(f"""
    s_lshr_b32 s37, s{W}, 1                   ; ch
    s_and_b32 s38, s{W}, 1
    s_add_u32 s39, s{D0}, s37                 ; d = d0 + ch
    v_and_b32 v3, 127, v0                     ; mode n
    s_lshl_b32 s40, s39, 8                    ; d*256 bytes
    v_lshl_add_u32 v4, v3, 1, s40
    s_lshl_b32 s41, s39, 1
    v_mov_b32 v5, s41                         ; d*2
    s_waitcnt lgkmcnt(0)
    """)
    CH, PAR, D = 37, 38, 39
    vLA, vAI, vCR, vCI, vLD, vDS = 8, 9, 10, 11, 12, 13
    a(f"""
    global_load_ushort v{vLA}, v4, s[20:21]
    global_load_ushort v{vLD}, v5, s[28:29]
    global_load_ushort v{vAI}, v4, s[22:23]
    global_load_ushort v{vCR}, v4, s[24:25]
    global_load_ushort v{vCI}, v4, s[26:27]
    global_load_ushort v{vDS}, v5, s[30:31]
    """)
    srd(a, 8, 0x200000)
    srd(a, 16, WS_SIZE)
    a(f"""
    s_lshl_b32 s42, s{I}, 7
    s_lshl_b32 s43, s{W}, 4
    s_add_u32 s42, s42, s43
    v_and_b32 v6, 15, v1
    v_add_u32 v6, s42, v6
    v_lshlrev_b32 v6, 10, v6
    s_lshl_b32 s44, s{D0}, 1                  ; d0*2 bytes
    v_lshlrev_b32 v7, 12, v0
    s_barrier
    buffer_load_dword v14, v6, s[8:11], s44 offen
    """)
    U = 16
    def gather(j):
        a(f"buffer_load_dwordx2 v[{U+2*j}:{U+2*j+1}], v7, s[8:11], s44 offen offset:{j*1024}")
    WA = 24
    a(f"""
    s_mul_i32 s45, s{CH}, {CH_TAB}
    v_lshlrev_b32 v3, 2, v3
    v_add_u32 v3, s45, v3
    """)
    for k in range(8):
        a(f"v_xor_b32 v{WA+k}, {k<<5}, v3")
    stamp(a, 1)
    a("s_waitcnt vmcnt(1)")
    ER, PH = 32, 33
    T0, T1 = 36, 37
    R0, R1 = 34, 38
    a(f"""
    v_lshlrev_b32 v{vLA}, 16, v{vLA}
    v_lshlrev_b32 v{vLD}, 16, v{vLD}
    v_mul_f32 v{vLA}, {LOG2E:#x}, v{vLA}
    v_mul_f32 v{vLD}, {LOG2E:#x}, v{vLD}
    v_exp_f32 v{vLA}, v{vLA}
    v_exp_f32 v{vLD}, v{vLD}
    v_lshlrev_b32 v{vAI}, 16, v{vAI}
    v_lshlrev_b32 v{vCR}, 16, v{vCR}
    v_lshlrev_b32 v{vCI}, 16, v{vCI}
    v_lshlrev_b32 v{vDS}, 16, v{vDS}
    """)
    rbf(a, vLA, vLA)
    rbf(a, vLD, vLD)
    a(f"""
    v_mul_f32 v{ER}, v{vLA}, v{vLD}
    v_mul_f32 v{PH}, v{vAI}, v{vLD}
    v_mul_f32 v{ER}, {LOG2E ^ 0x80000000:#x}, v{ER}
    v_mul_f32 v{PH}, {INV2PI:#x}, v{PH}
    v_add_f32 v{vLD}, v{vLD}, v{vLD}
    v_mul_f32 v{R0}, v{vCR}, v{vLD}
    v_mul_f32 v{R0+1}, v{vCI}, v{vLD}
    """)
    stamp(a, 2)
    W1, W2, W4, W8, WK = 40, 42, 44, 46, 48
    cexp(a, W8, W8+1, ER, PH, fhex(8.0), T0, T1)
    cexp(a, WK, WK+1, ER, PH, fhex(128.0), T0, T1)
    cexp(a, W1, W1+1, ER, PH, '1.0', T0, T1)
    pk_cmul(a, W2, W1, W1)
    pk_cmul(a, W4, W2, W2)
    PK = [56, 57, 58, 59]; pkc = [0]
    pend = []
    def put(row, s_, neg=False):
        pend.append((row, s_, neg))
    def flush(keep=0):
        while len(pend) > keep:
            row, s_, neg = pend.pop(0)
            p = PK[pkc[0] % 4]; pkc[0] += 1
            a(f"v_cvt_pk_bf16_f32 v{p}, v{s_}, {'-' if neg else ''}v{s_+1}")
            a(f"ds_write_b32 v{WA + (row & 7)}, v{p} offset:{row*512}")
    FR = [60, 62]; SR = [64, 66]
    a(f"v_mov_b32 v{PK[0]}, 0x3f80"); pkc[0] = 1
    a(f"ds_write_b32 v{WA + (F_ROW0 & 7)}, v{PK[0]} offset:{F_ROW0*512}")
    put(F_ROW0+1, W8, True); flush()
    fst = {'f': 1, 'cur': W8, 'n': 0}
    def fstep():
        if fst['f'] >= 15: return
        d = FR[fst['n'] & 1]; fst['n'] += 1
        pk_cmul(a, d, fst['cur'], W8)
        fst['f'] += 1; fst['cur'] = d
        put(F_ROW0+fst['f'], d, True); flush()
    Rc, Rn = R0, R1
    gather(0)
    for a_ in range(16):
        if a_ == 1: gather(1)
        if a_ == 3: gather(2)
        if a_ == 8: gather(3)
        if a_ > 0:
            pk_cmul(a, Rn, Rc, WK); Rc, Rn = Rn, Rc
        put(g_row_index(a_, 0), Rc); flush()
        if a_ < 2:   cs, w = list(range(1, 8)), W1
        elif a_ < 4: cs, w = [2, 4, 6, 8], W2
        elif a_ < 8: cs, w = [4, 8], W4
        else:        cs, w = [8], W8
        p = Rc
        for n_, c in enumerate(cs):
            sn = SR[n_ & 1]
            pk_cmul(a, sn, p, w)
            put(g_row_index(a_, c), sn); flush()
            p = sn
        fstep()
    while fst['f'] < 15: fstep()
    RA = 40
    a(f"""
    v_and_b32 v2, 15, v1                      ; row16 / f / i / r
    v_lshrrev_b32 v3, 4, v1
    v_and_b32 v4, 7, v2
    v_lshlrev_b32 v4, 1, v4
    v_xor_b32 v4, v4, v3
    v_lshlrev_b32 v4, 4, v4
    v_lshl_add_u32 v4, v2, 9, v4
    v_add_u32 v4, s45, v4
    s_lshl_b32 s46, s{PAR}, 8                 ; 4*half*64
    v_xor_b32 v4, s46, v4
    """)
    for s_ in range(4):
        a(f"v_xor_b32 v{RA+s_}, {s_*64}, v4")
    DD = 44
    FF, GG = 64, 80
    a("s_waitcnt lgkmcnt(0)")
    stamp(a, 3)
    for s_ in range(4):
        a(f"ds_read_b128 v[{FF+4*s_}:{FF+4*s_+3}], v{RA+s_} offset:{F_ROW0*512}")
        for T in range(4):
            g = GG + 16*s_ + 4*T
            a(f"ds_read_b128 v[{g}:{g+3}], v{RA+s_} offset:{T*8192}")
    for r in range(16): a(f"v_mov_b32 v{DD+r}, 0")
    XB = 147456
    a(f"""
    s_lshl_b32 s46, s{W}, 11
    s_add_u32 s46, s46, {XB}
    v_lshlrev_b32 v4, 4, v1
    v_add_u32 v5, s46, v4
    s_xor_b32 s46, s46, 2048
    v_add_u32 v4, s46, v4
    """)
    for s_ in range(4):
        a(f"s_waitcnt lgkmcnt({min(15, 5*(3-s_))})")
        for T in range(4):
            g = GG + 16*s_ + 4*T
            a(f"v_mfma_f32_16x16x32_bf16 v[{DD+4*T}:{DD+4*T+3}], v[{g}:{g+3}], v[{FF+4*s_}:{FF+4*s_+3}], v[{DD+4*T}:{DD+4*T+3}]")
    D0_, D1_ = 56, 60
    P = 64
    a(f"""
    s_mul_i32 s47, s{CH}, {KC_CH}
    s_add_u32 s47, s47, {KC_BASE}
    s_mov_b32 s48, 0x05040100
    s_mov_b32 s49, 0x07060302
    s_cmp_eq_u32 s{PAR}, 0
    s_cbranch_scc0 L_B_kx1
    ds_write_b128 v5, v[{DD+8}:{DD+11}]
    ds_write_b128 v5, v[{DD+12}:{DD+15}] offset:1024
    s_waitcnt lgkmcnt(0)
    s_barrier
    ds_read_b128 v[{D0_}:{D0_+3}], v4
    ds_read_b128 v[{D1_}:{D1_+3}], v4 offset:1024
    s_waitcnt lgkmcnt(0)
    """)
    for e in range(8): a(f"v_add_f32 v{D0_+e}, v{D0_+e}, v{DD+e}")
    a(f"""
    s_branch L_B_kxdone
    L_B_kx1:
    ds_write_b128 v5, v[{DD}:{DD+3}]
    ds_write_b128 v5, v[{DD+4}:{DD+7}] offset:1024
    s_waitcnt lgkmcnt(0)
    s_barrier
    ds_read_b128 v[64:67], v4
    ds_read_b128 v[68:71], v4 offset:1024
    s_waitcnt lgkmcnt(0)
    """)
    for e in range(7, -1, -1): a(f"v_add_f32 v{D0_+e}, v{DD+8+e}, v{64+e}")
    a.label("L_B_kxdone")
    stamp(a, 4)
    if fused:
        a(f"""
        s_cmp_eq_u32 s{W}, 0
        s_cbranch_scc0 L_B_nonr
        s_bfe_u32 s54, s2, 0x20003
        s_lshl_b32 s54, s54, 6
        v_mov_b32 v30, s54
        global_load_dword v31, v30, s[64:65] sc1
        L_B_nonr:
        """)
    a(f"""
    s_cmp_eq_u32 s{PAR}, 0
    s_cbranch_scc0 L_B_half1
    v_lshrrev_b32 v4, 1, v3
    v_lshlrev_b32 v4, 8, v4                   ; 256*(rg>>1)
    v_lshl_add_u32 v4, v2, 4, v4              ; +16 f
    v_and_b32 v5, 1, v3
    v_lshl_add_u32 v4, v5, 3, v4              ; +8*(rg&1)
    v_sub_u32 v4, {2044*2}, v4
    v_add_u32 v4, s47, v4
    v_cvt_pk_bf16_f32 v{P}, v{D0_+3}, v{D0_+2}
    v_cvt_pk_bf16_f32 v{P+1}, v{D0_+1}, v{D0_}
    ds_write_b64 v4, v[{P}:{P+1}]
    v_and_b32 v5, 1, v2
    v_cmp_eq_u32 vcc, 1, v5
    v_lshlrev_b32 v4, 9, v3                   ; 512 rg
    v_lshl_add_u32 v4, v2, 4, v4
    v_sub_u32 v4, {4080 - 16*16*8}, v4
    v_add_u32 v4, s47, v4
    v_cndmask_b32 v6, v{D1_}, v{D1_+1}, vcc
    v_cndmask_b32 v7, v{D1_+2}, v{D1_+3}, vcc
    v_cvt_pk_bf16_f32 v{P+4}, v{D1_+1}, v{D1_+1}
    v_cvt_pk_bf16_f32 v{P+5}, v{D1_+1}, v6
    v_cvt_pk_bf16_f32 v{P+6}, v{D1_}, v{D1_}
    v_mov_b32 v{P+7}, v{P+6}
    v_add_u32 v5, -256, v4
    ds_write_b128 v4, v[{P+4}:{P+7}]
    v_cvt_pk_bf16_f32 v{P+8}, v{D1_+3}, v{D1_+3}
    v_cvt_pk_bf16_f32 v{P+9}, v{D1_+3}, v7
    v_cvt_pk_bf16_f32 v{P+10}, v{D1_+2}, v{D1_+2}
    v_mov_b32 v{P+11}, v{P+10}
    ds_write_b128 v5, v[{P+8}:{P+11}]
    s_branch L_B_exp1done
    L_B_half1:
    v_lshlrev_b32 v4, 8, v3
    v_lshl_add_u32 v4, v2, 4, v4
    v_sub_u32 v5, {4080 - 16*16*4}, v4
    v_add_u32 v5, s47, v5
    v_cvt_pk_bf16_f32 v{P}, v{D0_+2}, v{D0_+2}
    v_cvt_pk_bf16_f32 v{P+1}, v{D0_+1}, v{D0_+1}
    v_cvt_pk_bf16_f32 v{P+2}, v{D0_+1}, v{D0_}
    v_cvt_pk_bf16_f32 v{P+3}, v{D0_}, v{D0_}
    ds_write_b128 v5, v[{P}:{P+3}]
    v_sub_u32 v5, {4080 - 16*16*2}, v4
    v_add_u32 v5, s47, v5
    v_cvt_pk_bf16_f32 v{P+4}, v{D0_+3}, v{D1_+3}
    v_cvt_pk_bf16_f32 v{P+5}, v{D1_+2}, v{D1_+2}
    v_cvt_pk_bf16_f32 v{P+6}, v{D1_+2}, v{D1_+1}
    v_cvt_pk_bf16_f32 v{P+7}, v{D1_}, v{D1_}
    v_mov_b32 v{P+8}, 0
    v_mov_b32 v{P+9}, 0
    v_mov_b32 v{P+10}, 0
    v_mov_b32 v{P+11}, 0
    v_lshlrev_b32 v6, 4, v1
    v_add_u32 v6, s47, v6
    s_mov_b32 exec_hi, 0
    ds_write_b128 v5, v[{P+4}:{P+7}]
    s_mov_b64 exec, 3
    ds_write_b128 v6, v[{P+8}:{P+11}] offset:4096
    s_mov_b64 exec, -1
    L_B_exp1done:
    """)
    a(f"""
    v_lshlrev_b32 v8, 3, v0
    v_add_u32 v8, {UT_BASE + 512}, v8
    s_cmp_lt_u32 s{W}, 2
    s_cbranch_scc0 L_B_nouz
    v_mov_b32 v{P+12}, 0
    v_mov_b32 v{P+13}, 0
    v_mov_b32 v{P+14}, 0
    v_mov_b32 v{P+15}, 0
    v_lshrrev_b32 v4, 5, v0                   ; ch = t>>5 (t<128)
    v_mul_u32_u24 v4, {UT_CH}, v4
    v_and_b32 v5, 31, v0
    v_lshl_add_u32 v4, v5, 4, v4
    v_add_u32 v4, {UT_BASE}, v4
    ds_write_b128 v4, v[{P+12}:{P+15}]
    L_B_nouz:
    s_waitcnt vmcnt(0)
    """)
    for ch in range(4):
        dw = ch >> 1; sel = 48 + (ch & 1)
        q = P + 16 + 2*ch
        a(f"v_perm_b32 v{q}, v{U+2+dw}, v{U+dw}, s{sel}")
        a(f"v_perm_b32 v{q+1}, v{U+6+dw}, v{U+4+dw}, s{sel}")
        a(f"ds_write_b64 v8, v[{q}:{q+1}] offset:{ch*UT_CH}")
    vU, vA, vS2 = 9, 10, 11
    a(f"""
    s_mul_i32 s50, s{CH}, {UT_CH}
    s_lshl_b32 s51, s{PAR}, 6
    s_sub_u32 s50, s50, s51
    s_add_u32 s50, s50, {UT_BASE + 512 - 64*6 - 32}
    v_lshlrev_b32 v4, 5, v2
    v_lshl_add_u32 v4, v3, 4, v4
    v_add_u32 v{vU}, s50, v4
    v_add_u32 v5, 1, v2
    v_and_b32 v6, 3, v5
    v_mul_u32_u24 v6, {KC_COPY}, v6
    v_lshrrev_b32 v5, 2, v5
    v_lshlrev_b32 v5, 3, v5
    v_sub_u32 v6, v6, v5
    v_lshl_add_u32 v6, v3, 4, v6
    s_sub_u32 s50, s47, s51
    s_add_u32 s50, s50, {2*2032 - 128*31}
    v_add_u32 v{vA}, s50, v6
    v_and_b32 v4, 127, v0
    v_lshlrev_b32 v4, 4, v4
    v_add_u32 v{vS2}, s47, v4
    v_add_u32 v12, -8, v{vS2}
    s_waitcnt lgkmcnt(0)
    s_barrier
    """)
    stamp(a, 5)
    def s2_read(b, off):
        a(f"ds_read_b64 v[{b}:{b+1}], v12 offset:{off}")
        a(f"ds_read_b128 v[{b+2}:{b+5}], v{vS2} offset:{off}")
    def s2_work(b, t, off):
        for j in range(-1, 3):
            a(f"v_alignbit_b32 v{t+1+j}, v{b+2+j}, v{b+1+j}, 16")
        a(f"ds_write_b128 v{vS2}, v[{t}:{t+3}] offset:{off + 3*KC_COPY}")
        for j in range(0, 4):
            a(f"v_alignbit_b32 v{t+4+j}, v{b+2+j}, v{b+1+j}, 16")
        a(f"ds_write_b128 v{vS2}, v[{t+4}:{t+7}] offset:{off + KC_COPY}")
        for j in range(4):
            a(f"v_mov_b32 v{t+8+j}, v{b+1+j}")
        a(f"ds_write_b128 v{vS2}, v[{t+8}:{t+11}] offset:{off + 2*KC_COPY}")
    s2_read(64, 0); s2_read(70, 2048)
    a(f"""
    v_and_b32 v5, 127, v0
    v_cmp_gt_u32 vcc, 2, v5
    s_and_saveexec_b64 s[52:53], vcc
    s_cbranch_execz L_B_nost3r
    """)
    s2_read(76, 4096)
    a("""
    L_B_nost3r:
    s_mov_b64 exec, s[52:53]
    s_waitcnt lgkmcnt(0)
    """)
    s2_work(64, 84, 0)
    s2_work(70, 96, 2048)
    a("""
    s_and_b64 exec, exec, vcc
    s_cbranch_execz L_B_nost3w
    """)
    s2_work(76, 108, 4096)
    a("""
    L_B_nost3w:
    s_mov_b64 exec, s[52:53]
    """)
    UF, ACC = 96, 224
    AF = [64, 68, 72, 76]
    for r in range(32): a(f"v_mov_b32 v{ACC+r}, 0")
    a("s_waitcnt lgkmcnt(0)")
    a("s_barrier")
    stamp(a, 6)
    def rd(tp):
        b = AF[tp & 3]; off = 128*(31-tp); u = 31 - tp
        a(f"ds_read_b64 v[{b}:{b+1}], v{vA} offset:{off}")
        a(f"ds_read_b64 v[{b+2}:{b+3}], v{vA} offset:{off+8}")
        a(f"ds_read_b128 v[{UF+4*u}:{UF+4*u+3}], v{vU} offset:{128*u}")
    def rdl(tp):
        b = AF[tp & 3]; off = 128*(31-tp); u = 31 - tp
        return [f"ds_read_b64 v[{b}:{b+1}], v{vA} offset:{off}",
                f"ds_read_b64 v[{b+2}:{b+3}], v{vA} offset:{off+8}",
                f"ds_read_b128 v[{UF+4*u}:{UF+4*u+3}], v{vU} offset:{128*u}"]
    rd(31); rd(30); rd(29)
    for tp in range(31, -1, -1):
        a(f"s_waitcnt lgkmcnt({min(6, 3*tp)})")
        b = AF[tp & 3]
        mf = []
        for tau in range(7, (tp >> 2) - 1, -1):
            u = 4*tau - tp + 3
            mf.append(f"v_mfma_f32_16x16x32_bf16 v[{ACC+4*tau}:{ACC+4*tau+3}], v[{b}:{b+3}], v[{UF+4*u}:{UF+4*u+3}], v[{ACC+4*tau}:{ACC+4*tau+3}]")
        nxt = rdl(tp-3) if tp - 3 >= 0 else []
        ins = {}
        for t, x in enumerate(nxt):
            ins.setdefault(min(len(mf), 1 + t*max(1, len(mf)//3)), []).append(x)
        weave(a, mf, ins)
    stamp(a, 7)
    UE = 64
    a(f"""
    s_mul_i32 s50, s{CH}, {UT_CH}
    s_lshl_b32 s51, s{PAR}, 11                ; 4par*256*2
    s_add_u32 s50, s50, s51
    s_add_u32 s50, s50, {UT_BASE + 512}
    v_lshlrev_b32 v6, 5, v2
    v_lshl_add_u32 v6, v3, 3, v6              ; (16 i + 4 rg)*2
    v_add_u32 v7, s50, v6
    """)
    for j in range(4):
        a(f"ds_read_b64 v[{UE+2*j}:{UE+2*j+1}], v7 offset:{512*j}")
    a(f"""
    s_lshl_b32 s50, s{W}, 12
    s_add_u32 s50, s50, {RED_BASE}
    v_lshlrev_b32 v4, 4, v1
    v_add_u32 v5, s50, v4
    s_xor_b32 s50, s{W}, 1
    s_lshl_b32 s50, s50, 12
    s_add_u32 s50, s50, {RED_BASE}
    v_add_u32 v4, s50, v4
    v_and_b32 v8, 1, v3
    v_lshlrev_b32 v8, 9, v8
    v_lshl_add_u32 v8, v2, 5, v8              ; + 32 i
    v_lshrrev_b32 v9, 1, v3
    v_lshl_add_u32 v8, v9, 4, v8              ; + 16 (rg>>1)
    s_lshl_b32 s50, s{D}, 12
    s_add_u32 s50, s50, s51
    s_add_u32 s50, s50, {WS_BT:#x}
    s_cmp_eq_u32 s{PAR}, 1
    s_cbranch_scc1 L_B_par1
    """)
    PR = 96
    def tail(keep, send):
        for j in range(4):
            a(f"ds_write_b128 v5, v[{send+4*j}:{send+4*j+3}] offset:{1024*j}")
        a("s_waitcnt lgkmcnt(4)")
        for j in range(4):
            a(f"v_lshlrev_b32 v{72+4*j}, 16, v{UE+2*j}")
            a(f"v_and_b32 v{73+4*j}, 0xffff0000, v{UE+2*j}")
            a(f"v_lshlrev_b32 v{74+4*j}, 16, v{UE+2*j+1}")
            a(f"v_and_b32 v{75+4*j}, 0xffff0000, v{UE+2*j+1}")
        for j in range(4):
            for e in range(4): a(f"v_fmac_f32 v{keep+4*j+e}, v{72+4*j+e}, v{13}")
        if fused:
            a("""
            s_load_dwordx4 s[28:31], s[0:1], 40
        s_load_dwordx2 s[8:9], s[0:1], 0
        s_load_dwordx2 s[20:21], s[0:1], 136
        s_load_dwordx2 s[24:25], s[0:1], 64
            """)
        a("s_waitcnt lgkmcnt(0)")
        a("s_barrier")
        for j in range(4):
            a(f"ds_read_b128 v[{PR+4*j}:{PR+4*j+3}], v4 offset:{1024*j}")
        for j in range(4):
            a(f"s_waitcnt lgkmcnt({3-j})")
            for e in range(4): a(f"v_add_f32 v{keep+4*j+e}, v{keep+4*j+e}, v{PR+4*j+e}")
            a(f"v_cvt_pk_bf16_f32 v{112+2*j}, v{keep+4*j}, v{keep+4*j+1}")
            a(f"v_cvt_pk_bf16_f32 v{113+2*j}, v{keep+4*j+2}, v{keep+4*j+3}")
        for jp in range(2):
            x0, x1, y0, y1 = 112+4*jp, 113+4*jp, 114+4*jp, 115+4*jp
            a(f"v_permlane16_swap_b32 v{x0}, v{y0}")
            a(f"v_permlane16_swap_b32 v{x1}, v{y1}")
            a(f"buffer_store_dwordx4 v[{x0}:{y1}], v8, s[16:19], s50 offen offset:{1024*jp} {SC}")
    tail(ACC, ACC+16)
    a("s_branch L_B_fin")
    a.label("L_B_par1")
    tail(ACC+16, ACC)
    a.label("L_B_fin")
    stamp(a, 8)
    if fused:
        a(f"""
        s_lshl_b32 s69, s33, 6
        s_lshl_b32 s68, s{I}, 2
        s_add_u32 s69, s69, s68
        s_add_u32 s69, s69, {WS_FLAG + 1024:#x}
        s_cmp_eq_u32 s{W}, 0
        s_cbranch_scc0 L_B_nonc
        s_mov_b32 s55, 0x8000
        L_B_nonp:
        v_readfirstlane_b32 s70, v31
        s_cmp_lg_u32 s70, 0
        s_cbranch_scc1 L_B_nonc
        global_load_dword v31, v30, s[64:65] sc1
        s_waitcnt vmcnt(0)
        s_sub_u32 s55, s55, 1
        s_cmp_lg_u32 s55, 0
        s_cbranch_scc1 L_B_nonp
        L_B_nonc:
        s_branch L_TAIL
        """)
        return
    stamp_flush(a, 0, 9)
    a("s_endpgm")
```

```python
from common import *

SLOT = 32768
RED = 4*SLOT

def phase2(SC="", exp=""):
    a = Asm()
    vm = VM(a)
    a("""
    s_cmp_ge_u32 s2, 256
    s_cbranch_scc1 L_P2_end
    """)
    stamp(a, 0)
    a("""
    s_load_dwordx2 s[16:17], s[0:1], 152      ; ws
    s_load_dwordx4 s[28:31], s[0:1], 40
    s_load_dwordx2 s[8:9], s[0:1], 0          ; x
    s_load_dwordx2 s[20:21], s[0:1], 136      ; out
    s_load_dwordx2 s[24:25], s[0:1], 64       ; A_Dskip
    v_lshrrev_b32 v2, 6, v0
    v_and_b32 v1, 63, v0
    s_and_b32 s33, s2, 7                      ; j
    v_readfirstlane_b32 s32, v2               ; w
    s_lshr_b32 s34, s2, 3                     ; idx
    s_lshr_b32 s35, s34, 3                    ; idx>>3
    s_and_b32 s36, s34, 7                     ; dtile
    s_lshl_b32 s37, s33, 2
    s_add_u32 s37, s37, s35                   ; rt
    s_lshl_b32 s40, s35, 1
    s_add_u32 s40, s40, s36
    s_and_b32 s40, s40, 7                     ; rot
    s_lshl_b32 s41, s37, 6                    ; l0
    s_lshl_b32 s42, s36, 6                    ; d0
    """)
    W, ROT, L0, D0 = 32, 40, 41, 42
    WI, WJ, KH = 43, 44, 45
    vH, vC0, vC1, vTR, vCB = 4, 5, 6, 8, 9
    a(f"""
    s_and_b32 s{WI}, s{W}, 1
    s_bfe_u32 s{WJ}, s{W}, 0x10001
    s_lshr_b32 s{KH}, s{W}, 2
    v_lshrrev_b32 v26, 3, v1                  ; r8
    v_and_b32 v27, 7, v1                      ; sig
    v_lshlrev_b32 v{vH}, 4, v1
    s_and_b32 s46, s{W}, 3
    s_lshl_b32 s47, s46, 16
    s_lshl_b32 s48, s{KH}, 21
    s_add_u32 s47, s47, s48
    v_add_u32 v{vH}, s47, v{vH}
    ; C
    v_lshrrev_b32 v28, 1, v26
    v_xor_b32 v27, v27, v28
    v_xor_b32 v28, 4, v27
    v_lshlrev_b32 v26, 10, v26
    v_lshl_add_u32 v{vC0}, v27, 4, v26
    v_lshl_add_u32 v{vC1}, v28, 4, v26
    v_add_u32 v{vC1}, 0x2000, v{vC1}
    s_lshl_b32 s46, s46, 4
    s_add_u32 s46, s46, s{D0}
    s_lshl_b32 s46, s46, 10
    v_add_u32 v{vC0}, s46, v{vC0}
    v_add_u32 v{vC1}, s46, v{vC1}
    s_lshl_b32 s50, s{W}, 11                  ; w*2048
    s_lshl_b32 s48, s{L0}, 1                  ; l0*2
    s_lshl_b32 s49, s{L0}, 4                  ; rt*1024 = l0*16
    s_waitcnt lgkmcnt(0)
    """)
    srd(a, 16, WS_SIZE)
    a(f"""
    s_cmp_lt_u32 s{W}, 4
    s_cselect_b32 s12, s28, s30
    s_cselect_b32 s13, s29, s31
    """)
    srd(a, 12, 0x80000)
    def issue(i):
        slot = (i & 3)*SLOT
        a(f"s_add_u32 s51, s{ROT}, {i}")
        a("s_and_b32 s51, s51, 7")
        a("s_lshl_b32 s52, s51, 18")
        a("s_add_u32 s52, s52, s49")
        a("s_add_u32 s53, s52, 32768")
        a("s_lshl_b32 s51, s51, 7")
        a(f"s_add_u32 m0, s50, {slot}")
        vm.op(f'c{i}', f"buffer_load_dwordx4 v{vH}, s[16:19], s52 offen lds")
        a(f"s_add_u32 m0, s50, {slot+16384}")
        vm.op(f'c{i}', f"buffer_load_dwordx4 v{vC0}, s[12:15], s51 offen lds")
        a(f"s_add_u32 m0, s50, {slot+1024}")
        vm.op(f'c{i}', f"buffer_load_dwordx4 v{vH}, s[16:19], s53 offen lds")
        a(f"s_add_u32 m0, s50, {slot+16384+1024}")
        vm.op(f'c{i}', f"buffer_load_dwordx4 v{vC1}, s[12:15], s51 offen lds")
    issue(0)
    a("s_barrier")
    issue(1)
    srd(a, 8, 0x200000)
    srd(a, 20, 0x400000)
    a(f"""
    v_and_b32 v26, 15, v1
    v_lshrrev_b32 v27, 2, v26                 ; r
    v_and_b32 v26, 3, v1                      ; c'
    v_lshrrev_b32 v28, 4, v1                  ; G
    v_and_b32 v29, 1, v28
    v_lshl_add_u32 v26, v29, 2, v26           ; q = 4(G&1)+c'
    v_and_b32 v29, 1, v26
    v_lshlrev_b32 v29, 2, v29
    v_lshrrev_b32 v26, 1, v26
    v_add_u32 v26, v26, v29                   ; lambda (0..7)
    v_lshrrev_b32 v28, 1, v28                 ; kg
    v_lshlrev_b32 v28, 10, v28                ; kg*1024
    v_and_b32 v29, 1, v26
    v_lshl_add_u32 v28, v29, 3, v28           ; + (lambda&1)*8
    v_lshrrev_b32 v29, 1, v26
    v_lshl_add_u32 v28, v29, 7, v28           ; + (lambda>>1)*128
    v_lshrrev_b32 v29, 2, v26                 ; b
    v_lshl_add_u32 v27, v29, 2, v27           ; 4b + r
    v_lshl_add_u32 v28, v27, 4, v28
    s_lshl_b32 s54, s{KH}, 13                 ; 8*kh*1024
    s_lshl_b32 s55, s{WI}, 9                  ; 4wi*128
    s_add_u32 s54, s54, s55
    v_add_u32 v{vTR}, s54, v28
    v_xor_b32 v7, 64, v{vTR}
    v_and_b32 v26, 31, v1                     ; n
    v_lshrrev_b32 v27, 5, v1                  ; kg
    v_bfe_u32 v28, v26, 1, 3
    v_xor_b32 v28, v28, v27
    v_lshlrev_b32 v28, 4, v28
    v_lshl_add_u32 v28, v26, 7, v28
    s_lshl_b32 s54, s{KH}, 13
    s_lshl_b32 s55, s{WJ}, 12
    s_add_u32 s54, s54, s55
    s_add_u32 s54, s54, 16384
    v_add_u32 v{vCB}, s54, v28
    """)
    for s_ in range(1, 4): a(f"v_xor_b32 v{vCB+s_}, {32*s_}, v{vCB}")
    ACC = 48
    for r in range(16): a(f"v_mov_b32 v{ACC+r}, 0")
    T0, T1, T2 = 26, 27, 28
    XE, BE, GE, DK = 72, 80, 84, 92
    vXo, vBo, vGo, vOo = 93, 94, 95, 15
    a(f"""
    v_lshrrev_b32 v{T0}, 5, v1                   ; hi
    v_and_b32 v{T1}, 31, v1                      ; n
    s_lshl_b32 s54, s{WI}, 5
    s_lshl_b32 s55, s{KH}, 3
    s_add_u32 s54, s54, s55
    v_lshl_add_u32 v{T0}, v{T0}, 4, s54          ; lrow
    s_lshl_b32 s55, s{WJ}, 5
    v_add_u32 v{T1}, s55, v{T1}                  ; dcol
    v_lshlrev_b32 v{T2}, 1, v{T1}
    v_lshl_add_u32 v{vXo}, v{T0}, 10, v{T2}
    v_lshlrev_b32 v{T2}, 1, v{T0}
    v_lshl_add_u32 v{vBo}, v{T1}, 12, v{T2}
    v_lshlrev_b32 v{vGo}, 2, v{T0}
    v_lshlrev_b32 v{T2}, 2, v{T1}
    v_lshl_add_u32 v{vOo}, v{T0}, 11, v{T2}
    v_add_u32 v14, s{D0}, v{T1}
    v_lshlrev_b32 v14, 1, v14
    """)
    def epi_loads():
        a(f"s_lshl_b32 s54, s{D0}, 12")
        a("s_add_u32 s54, s54, s48")
        a(f"s_add_u32 s54, s54, {WS_BT:#x}")
        vm.op('epi', f"buffer_load_dwordx4 v[{BE}:{BE+3}], v{vBo}, s[16:19], s54 offen")
        a(f"s_lshl_b32 s54, s{L0}, 2")
        a(f"s_add_u32 s54, s54, {WS_G:#x}")
        vm.op('epi', f"buffer_load_dwordx4 v[{GE}:{GE+3}], v{vGo}, s[16:19], s54 offen")
        vm.op('epi', f"buffer_load_dwordx4 v[{GE+4}:{GE+7}], v{vGo}, s[16:19], s54 offen offset:16")
        vm.op('epi', f"global_load_ushort v{DK}, v14, s[24:25]")
        a(f"s_lshl_b32 s54, s{L0}, 10")
        a(f"s_lshl_b32 s55, s{D0}, 1")
        a("s_add_u32 s54, s54, s55")
        for e in range(8):
            vm.op('epi', f"buffer_load_ushort v{XE+e}, v{vXo}, s[8:11], s54 offen")
            if e < 7: a("s_add_u32 s54, s54, 1024")
    TT, G2 = 160, 168
    def epi_pre(a):
        a(f"v_lshlrev_b32 v{DK}, 16, v{DK}")
        for e in range(8):
            q = e >> 1
            if e & 1: a(f"v_and_b32 v28, 0xffff0000, v{BE+q}")
            else:     a(f"v_lshlrev_b32 v28, 16, v{BE+q}")
            a(f"v_lshlrev_b32 v{XE+e}, 16, v{XE+e}")
            a(f"v_fma_f32 v{XE+e}, v{XE+e}, v{DK}, -v28")
            a(f"v_fma_f32 v{TT+e}, v{GE+e}, v{XE+e}, v28")
            a(f"v_add_f32 v{G2+e}, v{GE+e}, v{GE+e}")
    FS = [96, 128]
    def read_list(i):
        b = FS[i & 1]; off = (i & 1)*SLOT; L = []
        for s_ in range(4):
            o = off + s_*2048
            L.append(f"ds_read_b64_tr_b16 v[{b+4*s_}:{b+4*s_+1}], v{vTR} offset:{o}")
            L.append(f"ds_read_b64_tr_b16 v[{b+4*s_+2}:{b+4*s_+3}], v7 offset:{o}")
            L.append(f"ds_read_b128 v[{b+16+4*s_}:{b+16+4*s_+3}], v{vCB+s_} offset:{off}")
        return L
    def toggle():
        a(f"v_xor_b32 v{vTR}, 0x10000, v{vTR}")
        a("v_xor_b32 v7, 0x10000, v7")
        for r in range(4): a(f"v_xor_b32 v{vCB+r}, 0x10000, v{vCB+r}")
    vm.wait('c0')
    a("s_barrier")
    issue(2)
    for x in read_list(0): a(x)
    for i in range(8):
        if i < 7: stamp(a, i+1)
        b = FS[i & 1]
        if i < 7:
            vm.wait(f'c{i+1}')
            a("s_waitcnt lgkmcnt(0)")
            a("s_barrier")
            if (i+1) in (2, 4, 6): toggle()
            if i + 3 < 8: issue(i+3)
            if i == 3: epi_loads()
            rl = read_list(i+1)
        else:
            a("s_waitcnt lgkmcnt(0)")
            rl = []
        mf = [f"v_mfma_f32_32x32x16_bf16 v[{ACC}:{ACC+15}], v[{b+4*s_}:{b+4*s_+3}], v[{b+16+4*s_}:{b+16+4*s_+3}], v[{ACC}:{ACC+15}]" for s_ in range(4)]
        ins = {}
        for t, x in enumerate(rl):
            ins.setdefault(min(4, 1 + (t*3)//12), []).append(x)
        weave(a, mf, ins)
        if i == 6:
            vm.wait('epi')
            epi_pre(a)
    stamp(a, 8)
    a(f"""
    v_lshlrev_b32 v26, 4, v1
    s_lshl_b32 s54, s{W}, 11
    s_add_u32 s54, s54, {RED}
    v_add_u32 v27, s54, v26
    s_xor_b32 s54, s{W}, 4
    s_lshl_b32 s54, s54, 11
    s_add_u32 s54, s54, {RED}
    v_add_u32 v26, s54, v26
    s_lshl_b32 s54, s{L0}, 11
    s_lshl_b32 s55, s{D0}, 2
    s_add_u32 s54, s54, s55
    s_cmp_eq_u32 s{KH}, 1
    s_cbranch_scc1 L_P2_kh1
    """)
    def fin(keep, send):
        a(f"ds_write_b128 v27, v[{send}:{send+3}]")
        a(f"ds_write_b128 v27, v[{send+4}:{send+7}] offset:1024")
        for e in range(8): a(f"v_fmac_f32 v{TT+e}, v{G2+e}, v{keep+e}")
        a("s_waitcnt lgkmcnt(0)")
        a("s_barrier")
        a("ds_read_b128 v[96:99], v26")
        a("ds_read_b128 v[100:103], v26 offset:1024")
        for e in range(8):
            if e == 0: a("s_waitcnt lgkmcnt(1)")
            if e == 4: a("s_waitcnt lgkmcnt(0)")
            a(f"v_fmac_f32 v{TT+e}, v{G2+e}, v{96+e}")
            a(f"buffer_store_dword v{TT+e}, v{vOo}, s[20:23], s54 offen {SC}")
            if e < 7: a("s_add_u32 s54, s54, 2048")
    fin(ACC, ACC+8)
    a("s_branch L_P2_fin")
    a.label("L_P2_kh1")
    fin(ACC+8, ACC)
    a.label("L_P2_fin")
    stamp_flush(a, 1, 9)
    a.label("L_P2_end")
    a("s_endpgm")
    return a.text()
```

```python
from common import *

CS = 16384
HR = 6*CS
XT = 2*CS
BT = XT + 8192
RED = 3*CS

def gen_tail(a, SC="", LD="", exp=""):
    vm = VM(a)
    a.label("L_TAIL")
    a("""
    s_and_b32 s33, s2, 7                      ; j
    s_lshr_b32 s34, s2, 3                     ; idx
    s_lshr_b32 s35, s34, 3                    ; idx>>3
    s_and_b32 s36, s34, 7                     ; dtile
    s_lshl_b32 s37, s33, 2
    s_add_u32 s37, s37, s35                   ; rt
    s_lshl_b32 s40, s35, 1
    s_add_u32 s40, s40, s36
    s_and_b32 s40, s40, 7                     ; rot
    s_lshl_b32 s41, s37, 6                    ; l0
    s_lshl_b32 s42, s36, 6                    ; d0
    """)
    W, RT, DT, ROT, L0, D0 = 32, 37, 36, 40, 41, 42
    WI, WJ, KH = 43, 44, 45
    vH, vC0, vC1, vTR, vCB, vTR1 = 4, 5, 6, 8, 9, 7
    a(f"""
    s_and_b32 s{WI}, s{W}, 1
    s_bfe_u32 s{WJ}, s{W}, 0x10001
    s_lshr_b32 s{KH}, s{W}, 2
    v_lshrrev_b32 v26, 3, v1                  ; r8
    v_and_b32 v27, 7, v1                      ; sig
    v_lshlrev_b32 v{vH}, 4, v1
    s_and_b32 s46, s{W}, 3
    s_lshl_b32 s47, s46, 16
    s_lshl_b32 s48, s{KH}, 21
    s_add_u32 s47, s47, s48
    v_add_u32 v{vH}, s47, v{vH}
    v_lshrrev_b32 v28, 1, v26
    v_xor_b32 v27, v27, v28
    v_xor_b32 v28, 4, v27
    v_lshlrev_b32 v26, 10, v26
    v_lshl_add_u32 v{vC0}, v27, 4, v26
    v_lshl_add_u32 v{vC1}, v28, 4, v26
    v_add_u32 v{vC1}, 0x2000, v{vC1}
    s_lshl_b32 s46, s46, 4
    s_add_u32 s46, s46, s{D0}
    s_lshl_b32 s46, s46, 10
    v_add_u32 v{vC0}, s46, v{vC0}
    v_add_u32 v{vC1}, s46, v{vC1}
    s_lshl_b32 s50, s{W}, 11                  ; w*2048
    s_lshl_b32 s48, s{L0}, 1                  ; l0*2
    s_lshl_b32 s49, s{L0}, 4                  ; rt*1024
    s_lshr_b32 s54, s{RT}, 1
    s_lshl_b32 s54, s54, 6
    s_add_u32 s54, s54, {WS_FLAG:#x}
    s_lshl_b32 s55, s{DT}, 6
    s_add_u32 s55, s55, {WS_FLAG + 1024:#x}
    v_and_b32 v29, 7, v1
    v_lshlrev_b32 v29, 2, v29
    v_add_u32 v30, s54, v29
    v_and_b32 v29, 15, v1
    v_lshlrev_b32 v29, 2, v29
    v_add_u32 v31, s55, v29
    s_cmp_lt_u32 s{W}, 4
    s_cselect_b32 s12, s28, s30
    s_cselect_b32 s13, s29, s31
    """)
    srd(a, 12, 0x80000)
    a("s_waitcnt lgkmcnt(0)")
    a("s_barrier")
    stamp(a, 9)
    a(f"""
    s_cmp_eq_u32 s{W}, 0
    s_cbranch_scc0 L_T_nop1
    buffer_load_dword v34, v30, s[16:19], 0 offen sc1
    L_T_nop1:
    """)
    def cslot(i): return i if i < 6 else i - 6
    def kc(i):
        a(f"s_add_u32 s51, s{ROT}, {i}")
        a("s_and_b32 s51, s51, 7")
    def issue_c(i):
        kc(i)
        a("s_lshl_b32 s51, s51, 7")
        base = cslot(i)*CS
        a(f"s_add_u32 m0, s50, {base}")
        vm.op(f'c{i}', f"buffer_load_dwordx4 v{vC0}, s[12:15], s51 offen lds")
        a(f"s_add_u32 m0, s50, {base+1024}")
        vm.op(f'c{i}', f"buffer_load_dwordx4 v{vC1}, s[12:15], s51 offen lds")
    def issue_h(i):
        kc(i)
        a("s_lshl_b32 s52, s51, 18")
        a("s_add_u32 s52, s52, s49")
        a("s_add_u32 s53, s52, 32768")
        base = HR + (i & 3)*16384
        a(f"s_add_u32 m0, s50, {base}")
        vm.op(f'h{i}', f"buffer_load_dwordx4 v{vH}, s[16:19], s52 offen {LD} lds")
        a(f"s_add_u32 m0, s50, {base+1024}")
        vm.op(f'h{i}', f"buffer_load_dwordx4 v{vH}, s[16:19], s53 offen {LD} lds")
    NPRE = 6
    for t in exp.split('_'):
        if t.startswith('pre'): NPRE = int(t[3:])
    for i in range(NPRE): issue_c(i)
    a(f"s_waitcnt vmcnt({2*NPRE})")
    a("s_barrier")
    stamp(a, 10)
    a(f"""
    s_cmp_eq_u32 s{W}, 0
    s_cbranch_scc0 L_T_nopub
    v_mov_b32 v32, s70
    v_mov_b32 v33, s69
    s_mov_b64 exec, 1
    buffer_store_dword v32, v33, s[16:19], 0 offen sc1
    s_mov_b64 exec, -1
    L_T_nopub:
    """)
    for i in range(NPRE, 6): issue_c(i)
    srd(a, 8, 0x200000)
    srd(a, 20, 0x400000)
    a(f"""
    v_and_b32 v26, 15, v1
    v_lshrrev_b32 v27, 2, v26                 ; r
    v_and_b32 v26, 3, v1                      ; c'
    v_lshrrev_b32 v28, 4, v1                  ; G
    v_and_b32 v29, 1, v28
    v_lshl_add_u32 v26, v29, 2, v26           ; q = 4(G&1)+c'
    v_and_b32 v29, 1, v26
    v_lshlrev_b32 v29, 2, v29
    v_lshrrev_b32 v26, 1, v26
    v_add_u32 v26, v26, v29                   ; lambda (0..7)
    v_lshrrev_b32 v28, 1, v28                 ; kg
    v_lshlrev_b32 v28, 10, v28                ; kg*1024
    v_and_b32 v29, 1, v26
    v_lshl_add_u32 v28, v29, 3, v28           ; + (lambda&1)*8
    v_lshrrev_b32 v29, 1, v26
    v_lshl_add_u32 v28, v29, 7, v28           ; + (lambda>>1)*128
    v_lshrrev_b32 v29, 2, v26                 ; b
    v_lshl_add_u32 v27, v29, 2, v27           ; 4b + r
    v_lshl_add_u32 v28, v27, 4, v28
    s_lshl_b32 s54, s{KH}, 13                 ; 8*kh*1024
    s_lshl_b32 s55, s{WI}, 9                  ; 4wi*128
    s_add_u32 s54, s54, s55
    s_add_u32 s54, s54, {HR}
    v_add_u32 v{vTR}, s54, v28
    v_xor_b32 v{vTR1}, 64, v{vTR}
    v_and_b32 v26, 31, v1                     ; n
    v_lshrrev_b32 v27, 5, v1                  ; kg
    v_bfe_u32 v28, v26, 1, 3
    v_xor_b32 v28, v28, v27
    v_lshlrev_b32 v28, 4, v28
    v_lshl_add_u32 v28, v26, 7, v28
    s_lshl_b32 s54, s{KH}, 13
    s_lshl_b32 s55, s{WJ}, 12
    s_add_u32 s54, s54, s55
    v_add_u32 v{vCB}, s54, v28
    """)
    for s_ in range(1, 4): a(f"v_xor_b32 v{vCB+s_}, {32*s_}, v{vCB}")
    ACC = 48
    for r in range(16): a(f"v_mov_b32 v{ACC+r}, 0")
    T0, T1, T2 = 26, 27, 28
    XE, BE, GE, DK = 72, 80, 84, 92
    vXr, vBr, vGo, vOo, vXg, vBg = 93, 94, 95, 15, 16, 17
    a(f"""
    v_lshrrev_b32 v{T0}, 5, v1                   ; hi
    v_and_b32 v{T1}, 31, v1                      ; n
    s_lshl_b32 s54, s{WI}, 5
    s_lshl_b32 s55, s{KH}, 3
    s_add_u32 s54, s54, s55
    v_lshl_add_u32 v{T0}, v{T0}, 4, s54          ; lrow
    s_lshl_b32 s55, s{WJ}, 5
    v_add_u32 v{T1}, s55, v{T1}                  ; dcol
    v_lshlrev_b32 v{vGo}, 2, v{T0}
    v_lshlrev_b32 v{T2}, 2, v{T1}
    v_lshl_add_u32 v{vOo}, v{T0}, 11, v{T2}
    v_add_u32 v14, s{D0}, v{T1}
    v_lshlrev_b32 v14, 1, v14
    v_lshlrev_b32 v{T2}, 1, v{T0}
    v_lshl_add_u32 v{vBr}, v{T1}, 7, v{T2}
    v_add_u32 v{vBr}, {BT}, v{vBr}
    v_and_b32 v{T2}, 15, v1
    v_lshrrev_b32 v{T2}, 2, v{T2}
    v_add_u32 v{T2}, v{T2}, v{T0}
    v_lshlrev_b32 v{T2}, 7, v{T2}
    v_bfe_u32 v29, v1, 4, 1
    v_lshl_add_u32 v{T2}, v29, 5, v{T2}
    v_and_b32 v29, 3, v1
    v_lshl_add_u32 v{T2}, v29, 3, v{T2}
    s_lshl_b32 s55, s{WJ}, 6
    s_add_u32 s55, s55, {XT}
    v_add_u32 v{vXr}, s55, v{T2}
    v_lshrrev_b32 v{T2}, 3, v1
    s_lshl_b32 s54, s{W}, 3
    v_add_u32 v{T2}, s54, v{T2}
    v_and_b32 v29, 7, v1
    v_lshlrev_b32 v29, 4, v29
    v_lshl_add_u32 v{vXg}, v{T2}, 10, v29
    v_lshl_add_u32 v{vBg}, v{T2}, 12, v29
    """)
    a(f"""
    s_cmp_eq_u32 s{W}, 0
    s_cbranch_scc0 L_T_nopoll
    s_mov_b32 s55, 0x8000
    L_T_poll:
    v_cmp_ne_u32 vcc, s70, v34
    s_cbranch_vccz L_T_nopoll
    buffer_load_dword v34, v30, s[16:19], 0 offen sc1
    s_waitcnt vmcnt(0)
    s_sub_u32 s55, s55, 1
    s_cmp_lg_u32 s55, 0
    s_cbranch_scc1 L_T_poll
    L_T_nopoll:
    s_barrier
    """)
    stamp(a, 11)
    for i in range(4): issue_h(i)
    def epi_loads():
        a(f"s_lshl_b32 s54, s{L0}, 10")
        a(f"s_lshl_b32 s55, s{D0}, 1")
        a("s_add_u32 s54, s54, s55")
        a(f"s_lshl_b32 s55, s{W}, 10")
        a(f"s_add_u32 m0, s55, {XT}")
        vm.op('epi', f"buffer_load_dwordx4 v{vXg}, s[8:11], s54 offen lds")
        a(f"s_lshl_b32 s54, s{D0}, 12")
        a("s_add_u32 s54, s54, s48")
        a(f"s_add_u32 s54, s54, {WS_BT:#x}")
        a(f"s_add_u32 m0, s55, {BT}")
        vm.op('epi', f"buffer_load_dwordx4 v{vBg}, s[16:19], s54 offen {LD} lds")
        a(f"s_lshl_b32 s54, s{L0}, 2")
        a(f"s_add_u32 s54, s54, {WS_G:#x}")
        vm.op('epi', f"buffer_load_dwordx4 v[{GE}:{GE+3}], v{vGo}, s[16:19], s54 offen {LD}")
        vm.op('epi', f"buffer_load_dwordx4 v[{GE+4}:{GE+7}], v{vGo}, s[16:19], s54 offen offset:16 {LD}")
        vm.op('epi', f"global_load_ushort v{DK}, v14, s[24:25]")
    TT, G2 = 160, 168
    FS = [96, 128]
    def read_list(i):
        b = FS[i & 1]; L = []
        ho = (i & 3)*16384; co = (cslot(i) & 3)*CS
        for s_ in range(4):
            o = ho + s_*2048
            L.append(f"ds_read_b64_tr_b16 v[{b+4*s_}:{b+4*s_+1}], v{vTR} offset:{o}")
            L.append(f"ds_read_b64_tr_b16 v[{b+4*s_+2}:{b+4*s_+3}], v{vTR1} offset:{o}")
            L.append(f"ds_read_b128 v[{b+16+4*s_}:{b+16+4*s_+3}], v{vCB+s_} offset:{co}")
        return L
    def toggle():
        for r in range(4): a(f"v_xor_b32 v{vCB+r}, 0x10000, v{vCB+r}")
    vm.wait('h0', 'c0')
    a("s_barrier")
    for x in read_list(0): a(x)
    for i in range(8):
        b = FS[i & 1]
        if i < 7:
            vm.wait(f'h{i+1}', f'c{i+1}')
            a("s_waitcnt lgkmcnt(0)")
            a("s_barrier")
            if (i+1) in (4, 6): toggle()
            if i == 0:
                a(f"""
                s_cmp_eq_u32 s{W}, 0
                s_cbranch_scc0 L_T_nob1
                buffer_load_dword v35, v31, s[16:19], 0 offen sc1
                L_T_nob1:
                """)
            if i + 4 < 8: issue_h(i+4)
            if i + 6 < 8: issue_c(i+6)
            if i == 2:
                a(f"""
                s_cmp_eq_u32 s{W}, 0
                s_cbranch_scc0 L_T_nob2
                s_waitcnt vmcnt(10)
                s_mov_b32 s55, 0x8000
                L_T_pollb:
                v_cmp_ne_u32 vcc, s70, v35
                s_cbranch_vccz L_T_nob2
                buffer_load_dword v35, v31, s[16:19], 0 offen sc1
                s_waitcnt vmcnt(0)
                s_sub_u32 s55, s55, 1
                s_cmp_lg_u32 s55, 0
                s_cbranch_scc1 L_T_pollb
                L_T_nob2:
                """)
            if i == 3: epi_loads()
            rl = read_list(i+1)
        else:
            a("s_waitcnt lgkmcnt(0)")
            rl = [f"ds_read_b64_tr_b16 v[{XE}:{XE+1}], v{vXr}",
                  f"ds_read_b64_tr_b16 v[{XE+2}:{XE+3}], v{vXr} offset:512",
                  f"ds_read_b128 v[{BE}:{BE+3}], v{vBr}"]
        mf = [f"v_mfma_f32_32x32x16_bf16 v[{ACC}:{ACC+15}], v[{b+4*s_}:{b+4*s_+3}], v[{b+16+4*s_}:{b+16+4*s_+3}], v[{ACC}:{ACC+15}]" for s_ in range(4)]
        ins = {}
        for t, x in enumerate(rl):
            ins.setdefault(min(4, 1 + (t*3)//12), []).append(x)
        weave(a, mf, ins)
        if i == 6:
            vm.wait('epi')
            a("s_barrier")
    stamp(a, 12)
    a(f"""
    v_lshlrev_b32 v26, 4, v1
    s_lshl_b32 s54, s{W}, 11
    s_add_u32 s54, s54, {RED}
    v_add_u32 v27, s54, v26
    s_xor_b32 s54, s{W}, 4
    s_lshl_b32 s54, s54, 11
    s_add_u32 s54, s54, {RED}
    v_add_u32 v26, s54, v26
    s_lshl_b32 s54, s{L0}, 11
    s_lshl_b32 s55, s{D0}, 2
    s_add_u32 s54, s54, s55
    s_waitcnt lgkmcnt(0)
    v_lshlrev_b32 v{DK}, 16, v{DK}
    """)
    for e in range(8):
        q = e >> 1
        if e & 1:
            a(f"v_and_b32 v28, 0xffff0000, v{BE+q}")
            a(f"v_and_b32 v29, 0xffff0000, v{XE+q}")
        else:
            a(f"v_lshlrev_b32 v28, 16, v{BE+q}")
            a(f"v_lshlrev_b32 v29, 16, v{XE+q}")
        a(f"v_fma_f32 v29, v29, v{DK}, -v28")
        a(f"v_fma_f32 v{TT+e}, v{GE+e}, v29, v28")
        a(f"v_add_f32 v{G2+e}, v{GE+e}, v{GE+e}")
    a(f"s_cmp_eq_u32 s{KH}, 1")
    a("s_cbranch_scc1 L_T_kh1")
    def fin(keep, send):
        a(f"ds_write_b128 v27, v[{send}:{send+3}]")
        a(f"ds_write_b128 v27, v[{send+4}:{send+7}] offset:1024")
        for e in range(8): a(f"v_fmac_f32 v{TT+e}, v{G2+e}, v{keep+e}")
        a("s_waitcnt lgkmcnt(0)")
        a("s_barrier")
        a("ds_read_b128 v[96:99], v26")
        a("ds_read_b128 v[100:103], v26 offset:1024")
        for e in range(8):
            if e == 0: a("s_waitcnt lgkmcnt(1)")
            if e == 4: a("s_waitcnt lgkmcnt(0)")
            a(f"v_fmac_f32 v{TT+e}, v{G2+e}, v{96+e}")
            a(f"buffer_store_dword v{TT+e}, v{vOo}, s[20:23], s54 offen {SC}")
            if e < 7: a("s_add_u32 s54, s54, 2048")
    fin(ACC, ACC+8)
    a("s_branch L_T_fin")
    a.label("L_T_kh1")
    fin(ACC+8, ACC)
    a.label("L_T_fin")
    stamp_flush(a, 0, 13)
```

```python
import sys
sys.path.insert(0, 'gen')
from common import *
import phase1a, phase1b
import importlib

NAME = "gated_mix__ssm_conv_s5__ssm_conv_s4d__prompt"
HEADER = open('cdna_kernels/' + NAME + '.s.ref').read().split('; Override launch geometry')[0]

EXP = ''
SC1 = ''
SC2 = ''
def phase1():
    a = Asm()
    a("""
    s_cmp_ge_u32 s2, 256
    s_cbranch_scc1 L_P1_end
    s_cmp_ge_u32 s2, 128
    s_cbranch_scc1 L_P1_A
    """)
    phase1b.gen_B(a, SC=SC1)
    a.label("L_P1_A")
    phase1a.gen_A(a, SC=SC1)
    a.label("L_P1_end")
    a("s_endpgm")
    return a.text()

def fused():
    import tail
    a = Asm()
    a("""
    s_cmp_ge_u32 s2, 256
    s_cbranch_scc1 L_F_end
    s_cmp_ge_u32 s2, 128
    s_cbranch_scc1 L_F_A
    """)
    phase1b.gen_B(a, SC="sc1", fused=True)
    a.label("L_F_A")
    phase1a.gen_A(a, SC="sc1", fused=True)
    tail.gen_tail(a, SC=SC2, exp=EXP)
    a.label("L_F_end")
    a("s_endpgm")
    return a.text()

def build_fused():
    s = HEADER
    s += "; @launch grid=(256,1,1) block=(512,1,1) lds=163840\n"
    s += '.amdgcn_target "amdgcn-amd-amdhsa--gfx950"\n.text\n'
    s += kernel_head(NAME + "_kernel") + fused()
    s += '.section .rodata,"a"\n.p2align 6\n'
    s += kernel_desc(NAME + "_kernel", 256)
    return s

def build(phases=(1, 2)):
    if phases == (0,): return build_fused()
    s = HEADER
    if 1 in phases: s += "; @launch kernel=phase1_kernel grid=(256,1,1) block=(512,1,1) lds=163840\n"
    if 2 in phases: s += "; @launch kernel=phase2_kernel grid=(256,1,1) block=(512,1,1) lds=163840\n"
    s += '.amdgcn_target "amdgcn-amd-amdhsa--gfx950"\n.text\n'
    if 1 in phases: s += kernel_head("phase1_kernel") + phase1()
    if 2 in phases:
        import phase2
        s += kernel_head("phase2_kernel") + phase2.phase2(SC=SC2, exp=EXP)
    s += '.section .rodata,"a"\n.p2align 6\n'
    if 1 in phases: s += kernel_desc("phase1_kernel", 256) + ".p2align 6\n"
    if 2 in phases: s += kernel_desc("phase2_kernel", 256)
    return s

if __name__ == "__main__":
    out = sys.argv[1] if len(sys.argv) > 1 else 'p1.s'
    ph = tuple(int(c) for c in sys.argv[2]) if len(sys.argv) > 2 else (1, 2)
    import common
    common.STAMPS = len(sys.argv) > 3 and sys.argv[3] in ('stamps','dbg')
    common.DBGSTAMPS = len(sys.argv) > 3 and sys.argv[3] == 'dbg'
    for x in sys.argv[4:]:
        if x.startswith('sc1='): SC1 = x[4:].replace('_', ' ')
        elif x.startswith('sc2='): SC2 = x[4:].replace('_', ' ')
        else: EXP = x
    open(out, 'w').write(build(ph))
    print("wrote", out)
```

```python
import hazard
LOG2E = 0x3fb8aa3b
INV2PI = 0x3e22f983

WS_HT  = 0
WS_BT  = 4 << 20
WS_E   = 6 << 20
WS_G   = WS_E + 131072
WS_FLAG = WS_G + 8192
WS_STAMP = (6 << 20) + (512 << 10)
WS_SIZE = 7 << 20
STAMPS = False
DBGSTAMPS = False
DBGSEL = [1, 3, 5, 8, 10, 11, 13]

class Asm:
    def __init__(self):
        self.lines = []
    def __call__(self, s):
        for l in s.strip('\n').split('\n'):
            l = l.strip()
            if not l: continue
            if l.endswith(':') and ' ' not in l: self.lines.append(l)
            else: self.lines.append('    ' + l)
    def label(self, n): self.lines.append(n + ':')
    def c(self, s): self.lines.append('    ; ' + s)
    def text(self, fix=True):
        L = hazard.fix(self.lines) if fix else self.lines
        return '\n'.join(L) + '\n'

def vr(b, n=1):
    return f"v{b}" if n == 1 else f"v[{b}:{b+n-1}]"
def sr(b, n=1):
    return f"s{b}" if n == 1 else f"s[{b}:{b+n-1}]"

def srd(a, base, size, ptr=None):
    if ptr is not None and ptr != base:
        a(f"s_mov_b32 s{base}, s{ptr}")
        a(f"s_mov_b32 s{base+1}, s{ptr+1}")
    a(f"s_mov_b32 s{base+2}, {size:#x}")
    a(f"s_mov_b32 s{base+3}, 0x20000")

def cmul(a, dr, di, ar, ai, br, bi, t0, t1):
    a(f"v_mul_f32 v{t0}, v{ai}, v{bi}")
    a(f"v_mul_f32 v{t1}, v{ai}, v{br}")
    if dr not in (ar, bi):
        a(f"v_fma_f32 v{dr}, v{ar}, v{br}, -v{t0}")
        a(f"v_fma_f32 v{di}, v{ar}, v{bi}, v{t1}")
    else:
        assert di not in (ar, br), (dr, di, ar, ai, br, bi)
        a(f"v_fma_f32 v{di}, v{ar}, v{bi}, v{t1}")
        a(f"v_fma_f32 v{dr}, v{ar}, v{br}, -v{t0}")

def csq(a, dr, di, ar, ai, t0):
    a(f"v_mul_f32 v{t0}, v{ai}, v{ai}")
    if di == ai:
        a(f"v_mul_f32 v{di}, v{ar}, v{ai}")
        a(f"v_add_f32 v{di}, v{di}, v{di}")
    else:
        a(f"v_add_f32 v{di}, v{ai}, v{ai}")
        a(f"v_mul_f32 v{di}, v{ar}, v{di}")
    a(f"v_fma_f32 v{dr}, v{ar}, v{ar}, -v{t0}")

def rbf(a, d, s):
    a(f"v_cvt_pk_bf16_f32 v{d}, v{s}, v{s}")
    a(f"v_and_b32 v{d}, 0xffff0000, v{d}")

def cexp(a, dr, di, er, ph, m, t0, t1):
    if m == '1.0':
        a(f"v_exp_f32 v{t0}, v{er}")
        a(f"v_fract_f32 v{t1}, v{ph}")
    else:
        a(f"v_mul_f32 v{t0}, {m}, v{er}")
        a(f"v_mul_f32 v{t1}, {m}, v{ph}")
        a(f"v_exp_f32 v{t0}, v{t0}")
        a(f"v_fract_f32 v{t1}, v{t1}")
    a(f"v_cos_f32 v{dr}, v{t1}")
    a(f"v_sin_f32 v{di}, v{t1}")
    a(f"v_mul_f32 v{dr}, v{dr}, v{t0}")
    a(f"v_mul_f32 v{di}, v{di}, v{t0}")

def fhex(x):
    import struct
    return "0x%08x" % struct.unpack("<I", struct.pack("<f", x))[0]

def kernel_head(name):
    return f""".globl {name}
.p2align 8
.type {name},@function
{name}:
"""
def kernel_desc(name, nv, acc=None, ns=102):
    acc = acc or nv
    return f""".amdhsa_kernel {name}
  .amdhsa_next_free_vgpr {nv}
  .amdhsa_next_free_sgpr {ns}
  .amdhsa_accum_offset {acc}
  .amdhsa_group_segment_fixed_size 0
  .amdhsa_kernarg_size 160
  .amdhsa_user_sgpr_count 2
  .amdhsa_user_sgpr_kernarg_segment_ptr 1
  .amdhsa_system_sgpr_workgroup_id_x 1
  .amdhsa_float_denorm_mode_32 3
.end_amdhsa_kernel
"""

def stamp(a, k):
    import common
    if common.STAMPS:
        a(f"s_memrealtime s[{74+2*k}:{75+2*k}]")
        if k == 0: a("s_memtime s[72:73]")

def stamp_flush(a, phase, n, wsrd=16, wavereg=32):
    import common
    if not common.STAMPS: return
    a("s_waitcnt vmcnt(0)")
    stamp(a, n)
    if common.DBGSTAMPS:
        lab = f"L_dbg_skip_{len(a.lines)}"
        a("s_load_dwordx2 s[60:61], s[0:1], 144")
        a("s_waitcnt lgkmcnt(0)")
        a("s_and_b32 s58, s2, 127")
        a(f"s_or_b32 s58, s58, s{wavereg}")
        a("s_cmp_eq_u32 s58, 0")
        a(f"s_cbranch_scc0 {lab}")
        a("s_lshr_b32 s58, s2, 7")
        a("s_lshl_b32 s58, s58, 5")
        a("v_mov_b32 v3, s58")
        a("s_mov_b64 exec, 1")
        sel = common.DBGSEL
        for q, k in enumerate(sel):
            a(f"s_sub_u32 s59, s{74+2*k}, s74")
            a("v_mov_b32 v4, s59")
            a(f"global_store_dword v3, v4, s[60:61] offset:{4*(q+1)}")
            a("s_nop 1")
        a("s_waitcnt vmcnt(0)")
        a(f"{lab}:")
        return
    a("s_memtime s[56:57]")
    a("s_getreg_b32 s58, hwreg(HW_REG_XCC_ID)")
    a("s_waitcnt lgkmcnt(0)")
    a("s_sub_u32 s56, s56, s72")
    a(f"s_lshl_b32 s59, s2, 3")
    a(f"s_add_u32 s59, s59, s{wavereg}")
    a(f"s_lshl_b32 s59, s59, 7")
    a(f"s_add_u32 s59, s59, {WS_STAMP + phase*262144:#x}")
    a("v_mov_b32 v3, 0")
    a("s_mov_b64 exec, 1")
    for k in range(n+1):
        a(f"v_mov_b32 v4, s{74+2*k}")
        a(f"v_mov_b32 v5, s{75+2*k}")
        a(f"buffer_store_dwordx2 v[4:5], v3, s[{wsrd}:{wsrd+3}], s59 offen offset:{8*k}")
        a("s_nop 1")
    a("v_mov_b32 v4, s56")
    a("v_mov_b32 v5, s58")
    a(f"buffer_store_dwordx2 v[4:5], v3, s[{wsrd}:{wsrd+3}], s59 offen offset:120")
    a("s_waitcnt vmcnt(0)")

class VM:
    def __init__(self, a): self.a = a; self.ops = []
    def op(self, tag, text):
        self.a(text); self.ops.append(tag)
    def wait(self, *tags):
        idx = [i for i, t in enumerate(self.ops) if t in tags]
        if not idx: return
        last = max(idx)
        n = len(self.ops) - 1 - last
        assert n <= 63
        self.a(f"s_waitcnt vmcnt({n})")

def P(r): return f"v[{r}:{r+1}]"
def pk_cmul(a, d, s, w):
    assert d % 2 == 0 and s % 2 == 0 and w % 2 == 0 and d != s
    a(f"v_pk_mul_f32 {P(d)}, {P(s)}, {P(w)} op_sel:[1,1] op_sel_hi:[1,0] neg_lo:[0,1]")
    a(f"v_pk_fma_f32 {P(d)}, {P(s)}, {P(w)}, {P(d)} op_sel_hi:[0,1,1]")
def pk_cmac(a, d, s, w):
    assert d % 2 == 0 and s % 2 == 0 and w % 2 == 0 and d != s
    a(f"v_pk_fma_f32 {P(d)}, {P(s)}, {P(w)}, {P(d)} op_sel:[1,1,0] op_sel_hi:[1,0,1] neg_lo:[0,1,0]")
    a(f"v_pk_fma_f32 {P(d)}, {P(s)}, {P(w)}, {P(d)} op_sel_hi:[0,1,1]")

class Buf(Asm):
    def items(self): return [l.strip() for l in self.lines]

def weave(a, main, inserts):
    for i in range(len(main)+1):
        for x in inserts.get(i, []): a(x)
        if i < len(main): a(main[i])
```
